```python
import torch

def _softmax(x, axis=-1):
    return torch.softmax(x, dim=axis)
def _gelu(x):
    return torch.nn.functional.gelu(x, approximate="tanh")
def _silu(x):
    return torch.nn.functional.silu(x)
def _sigmoid(x):
    return torch.sigmoid(x)
def _layernorm(x, axis=-1, eps=1e-5):
    m = x.mean(dim=axis, keepdim=True)
    v = x.var(dim=axis, keepdim=True, unbiased=False)
    return (x - m) / torch.sqrt(v + eps)
def _scatter_add(tgt, idx, src, axis=0):
    return tgt.clone().index_add_(axis, idx, src)
def _segment_sum(src, seg, n):
    out = torch.zeros((n,) + src.shape[1:], dtype=src.dtype)
    return out.index_add_(0, seg, src)
def _pad(x, pw):
    flat = tuple(v for pair in reversed(pw) for v in pair)
    return torch.nn.functional.pad(x, flat)

kernel_name = 'concat_heads__sliding_block_cached__gqa_block_cached__decode'

def setup_inputs():

    _w = (lambda a: (lambda t: t.to(torch.bfloat16) if t.is_floating_point() else t)(torch.as_tensor(a)))
    def _A_setup():
        B, Sq, D = 1, 1, 576
        Hq, Hkv, Sk, Dh = 32, 16, 8192, 128
        assert Hq % Hkv == 0, (Hq, Hkv)
        return {
            "x": _w((lambda *s: torch.randn(*s, dtype=torch.bfloat16) * 0.8)(B, Sq, D)),
            "k_cache": _w((lambda *s: torch.randn(*s, dtype=torch.bfloat16) * 1.6)(B, Hkv, Sk, Dh)),
            "v_cache": _w((lambda *s: torch.randn(*s, dtype=torch.bfloat16) * 0.2)(B, Hkv, Sk, Dh)),
            "wq": _w((lambda *s: torch.randn(*s, dtype=torch.bfloat16) * 1.6)(D, Hq * Dh) * (D ** -0.5)),
            "wo": _w((lambda *s: torch.randn(*s, dtype=torch.bfloat16) * 0.2)(Hq * Dh, D) * ((Hq * Dh) ** -0.5)),
        }
    _A_in = _A_setup()

    def _B_setup():
        B, Sq, D = 1, 1, 576
        Hq, Hkv, Sk, Dh = 32, 16, 8192, 128
        assert Hq % Hkv == 0, (Hq, Hkv)
        return {
            "x": _w((lambda *s: torch.randn(*s, dtype=torch.bfloat16) * 0.8)(B, Sq, D)),
            "k_cache": _w((lambda *s: torch.randn(*s, dtype=torch.bfloat16) * 1.6)(B, Hkv, Sk, Dh)),
            "v_cache": _w((lambda *s: torch.randn(*s, dtype=torch.bfloat16) * 0.2)(B, Hkv, Sk, Dh)),
            "wq": _w((lambda *s: torch.randn(*s, dtype=torch.bfloat16) * 1.6)(D, Hq * Dh) * (D ** -0.5)),
            "wo": _w((lambda *s: torch.randn(*s, dtype=torch.bfloat16) * 0.2)(Hq * Dh, D) * ((Hq * Dh) ** -0.5)),
        }
    _B_in = _B_setup()

    return {
        "A_x": _A_in["x"],
        "A_k_cache": _A_in["k_cache"],
        "A_v_cache": _A_in["v_cache"],
        "A_wq": _A_in["wq"],
        "A_wo": _A_in["wo"],
        "B_x": _B_in["x"],
        "B_k_cache": _B_in["k_cache"],
        "B_v_cache": _B_in["v_cache"],
        "B_wq": _B_in["wq"],
        "B_wo": _B_in["wo"],
    }

def reference(A_x, A_k_cache, A_v_cache, A_wq, A_wo, B_x, B_k_cache, B_v_cache, B_wq, B_wo):
    def _A_ref(x, k_cache, v_cache, wq, wo):
        B, Sq, D = x.shape
        Hq, Dh = 32, 128
        Hkv, Sk = k_cache.shape[1], k_cache.shape[2]
        W = min(4096, max(256, Sk // 4))
        rep = Hq // Hkv
        q = (lambda x, *d: x.permute(*d))((x @ wq).reshape(B, Sq, Hq, Dh), 0, 2, 1, 3)
        k = (lambda x, n, axis: torch.repeat_interleave(x, n, dim=axis))(k_cache[:, :, Sk - W:, :], rep, axis=1)
        v = (lambda x, n, axis: torch.repeat_interleave(x, n, dim=axis))(v_cache[:, :, Sk - W:, :], rep, axis=1)
        scores = torch.einsum("bhqd,bhkd->bhqk", q, k) * (Dh ** -0.5)
        p = _softmax(scores, axis=-1)
        o = torch.einsum("bhqk,bhkd->bhqd", p, v)
        return (lambda x, *d: x.permute(*d))(o, 0, 2, 1, 3).reshape(B, Sq, Hq * Dh) @ wo

    def _B_ref(x, k_cache, v_cache, wq, wo):
        B, Sq, D = x.shape
        Hq, Dh = 32, 128
        Hkv = k_cache.shape[1]
        rep = Hq // Hkv
        q = (lambda x, *d: x.permute(*d))((x @ wq).reshape(B, Sq, Hq, Dh), 0, 2, 1, 3)
        k = (lambda x, n, axis: torch.repeat_interleave(x, n, dim=axis))(k_cache, rep, axis=1)
        v = (lambda x, n, axis: torch.repeat_interleave(x, n, dim=axis))(v_cache, rep, axis=1)
        scores = torch.einsum("bhqd,bhkd->bhqk", q, k) * (Dh ** -0.5)
        p = _softmax(scores, axis=-1)
        o = torch.einsum("bhqk,bhkd->bhqd", p, v)
        return (lambda x, *d: x.permute(*d))(o, 0, 2, 1, 3).reshape(B, Sq, Hq * Dh) @ wo

    a = _A_ref(A_x, A_k_cache, A_v_cache, A_wq, A_wo)
    b = _B_ref(B_x, B_k_cache, B_v_cache, B_wq, B_wo)
    return torch.concatenate([a, b], axis=-1)
```

```python
import re

TRANS = ("v_exp_f32", "v_log_f32", "v_rcp_f32", "v_rsq_f32", "v_sqrt_f32", "v_sin_f32", "v_cos_f32")

def regs_of(tok):
    tok = tok.strip()
    tok = tok.lstrip("-")
    m = re.fullmatch(r"abs\((.*)\)", tok)
    if m: tok = m.group(1)
    m = re.fullmatch(r"\|(.*)\|", tok)
    if m: tok = m.group(1)
    m = re.fullmatch(r"([vsa])(\d+)", tok)
    if m: return {(m.group(1), int(m.group(2)))}
    m = re.fullmatch(r"([vsa])\[(\d+):(\d+)\]", tok)
    if m: return {(m.group(1), i) for i in range(int(m.group(2)), int(m.group(3)) + 1)}
    if tok in ("vcc", "vcc_lo", "vcc_hi"): return {("vcc", 0)}
    if tok in ("exec", "exec_lo", "exec_hi"): return {("exec", 0)}
    if tok == "m0": return {("m0", 0)}
    return set()

def split_ops(s):
    out, depth, cur = [], 0, ""
    for ch in s:
        if ch == "[": depth += 1
        if ch == "]": depth -= 1
        if ch == "," and depth == 0:
            out.append(cur); cur = ""
        else:
            cur += ch
    if cur.strip(): out.append(cur)
    return [o.strip() for o in out]

class Ins:
    def __init__(self, text):
        self.text = text
        t = text.split(";")[0].strip()
        parts = t.split(None, 1)
        self.mn = parts[0]
        rest = parts[1] if len(parts) > 1 else ""
        ops = split_ops(rest)
        mods = ""
        if ops:
            lp = ops[-1].split(None, 1)
            ops[-1] = lp[0]
            mods = lp[1] if len(lp) > 1 else ""
        self.ops, self.mods = ops, mods
        mn = self.mn
        self.kind = ("mfma" if mn.startswith("v_mfma") else "valu" if mn.startswith("v_") else
                     "vmem" if mn.startswith(("buffer_", "global_")) else "ds" if mn.startswith("ds_") else "salu")
        self.dpp = mn.endswith("_dpp")
        self.perml = mn.startswith("v_permlane")
        self.trans = any(mn.startswith(x) for x in TRANS)
        self.states = 1
        if mn == "s_nop": self.states = int(ops[0], 0) + 1
        R = [regs_of(o) for o in ops]
        self.w, self.r = set(), set()
        self.srcc = set(); self.ab = set()
        self.storedata = set()
        if self.kind == "mfma":
            self.w = R[0]; self.ab = R[1] | R[2]; self.srcc = R[3]; self.r = self.ab | self.srcc
        elif self.kind == "valu":
            if self.perml:
                self.w = R[0] | R[1]; self.r = R[0] | R[1]
            else:
                self.w = set(R[0]); src = R[1:]
                if mn.startswith(("v_add_co", "v_sub_co", "v_addc_co", "v_subb_co", "v_mad_u64")):
                    self.w |= R[1]; src = R[2:]
                for x in src: self.r |= x
                if mn.startswith(("v_fmac", "v_dot2c")) or self.dpp: self.r |= R[0]
                if mn.startswith("v_cndmask") and len(ops) == 3: self.r |= {("vcc", 0)}
        elif self.kind == "vmem":
            if "store" in mn or "atomic" in mn:
                for x in R: self.r |= x
                if "x4" in mn or "x3" in mn: self.storedata = R[0]
            elif " lds" in (" " + mods):
                for x in R: self.r |= x
            else:
                self.w = R[0]
                for x in R[1:]: self.r |= x
        elif self.kind == "ds":
            if mn.startswith(("ds_read", "ds_bpermute", "ds_permute", "ds_swizzle")) or "_rtn" in mn:
                self.w = R[0]
                for x in R[1:]: self.r |= x
            else:
                for x in R: self.r |= x
        else:
            if mn.startswith(("s_cmp", "s_cbranch", "s_branch", "s_waitcnt", "s_barrier", "s_nop", "s_sleep", "s_setprio", "s_endpgm")):
                for x in R: self.r |= x
            elif R:
                self.w = R[0]
                for x in R[1:]: self.r |= x

def need(p, c):
    n = 0
    pv = {x for x in p.w if x[0] in "va"}
    ps = {x for x in p.w if x[0] in ("s", "vcc")}
    if p.kind == "valu":
        if c.kind == "mfma" and pv & c.r: n = max(n, 2)
        if c.kind == "valu":
            if c.dpp and pv & c.r: n = max(n, 2)
            if c.perml and pv & c.r: n = max(n, 2)
            if c.mn.startswith(("v_readfirstlane", "v_readlane")) and pv & c.r: n = max(n, 1)
            if p.trans and not c.trans and pv & c.r: n = max(n, 1)
            if ps & c.r: n = max(n, 4 if c.mn.startswith(("v_readlane", "v_writelane")) else 2)
        if c.kind == "vmem" and ps & c.r: n = max(n, 5)
        if ("exec", 0) in p.w: n = max(n, 5)
    if p.kind == "mfma":
        if c.kind == "mfma":
            if p.w & c.ab: n = max(n, 8)
            if p.w & c.srcc and p.w != c.srcc: n = max(n, 6)
            if p.w & c.w and p.w != c.srcc: n = max(n, 6)
        elif c.kind in ("valu", "vmem", "ds"):
            if p.w & (c.r | c.w): n = max(n, 8)
            if c.kind == "valu" and p.srcc & c.w: n = max(n, 3)
    if p.storedata and p.storedata & c.w:
        n = max(n, 2)
    if p.kind == "salu" and ("m0", 0) in p.w and c.kind in ("vmem", "ds"): n = max(n, 1)
    return n

class Asm:
    def __init__(self):
        self.lines = []
        self.hist = []
        self.npad = 0
    def raw(self, s):
        self.lines.append(s)
    def label(self, name):
        self.lines.append(name + ":")
    def cut(self):
        self.hist = []
    def __call__(self, text):
        for t in text.strip().split("\n"):
            t = t.strip()
            if not t or t.startswith(";"):
                if t: self.lines.append("    " + t)
                continue
            if t.endswith(":"):
                self.label(t[:-1]); continue
            c = Ins(t)
            dist, pad = 0, 0
            for p in reversed(self.hist):
                nn = need(p, c)
                if nn > dist: pad = max(pad, nn - dist)
                dist += p.states
                if dist > 24: break
            if pad:
                self.npad += pad
                nop = Ins(f"s_nop {pad-1}")
                self.lines.append(f"    s_nop {pad-1}")
                self.hist.append(nop)
            self.lines.append("    " + t)
            self.hist.append(c)
            self.hist = self.hist[-40:]
            if c.mn in ("s_branch", "s_endpgm"): self.cut()
    def text(self):
        return "\n".join(self.lines) + "\n"
```

```python
import sys, math, struct
sys.path.insert(0, "gen")
from asmlib import Asm

NAME = "concat_heads__sliding_block_cached__gqa_block_cached__decode"
HDR = open("cdna_kernels/" + NAME + ".s.ref").read().split("; Override launch")[0]

def f32bits(x): return struct.unpack("<I", struct.pack("<f", x))[0]

SLOT = 4352
YOFF = 1280
QP = 2 << 20
WS_REC = 16 << 20
STAMP = 8 << 20
OOB = 0x40000000
NU = 43
L_Q = 0
L_M = 512
L_L = 1536
L_O = 2560
LDS_BYTES = 6656

def gen(ld="nt", stamps=False, first11=18, vgap=6, D=22, spin=200000, wld=None):
    wld = ld if wld is None else wld
    a = Asm()
    a.raw(HDR.rstrip("\n"))
    a.raw(f"; @launch grid=(256,1,1) block=(512,1,1) lds={LDS_BYTES}")
    a.raw('.amdgcn_target "amdgcn-amd-amdhsa--gfx950"')
    a.raw(".text"); a.raw(f".globl {NAME}_kernel"); a.raw(".p2align 8"); a.raw(f".type {NAME}_kernel,@function")
    a.label(f"{NAME}_kernel")
    nst = [0]
    def stamp(i):
        if stamps: a(f"s_memrealtime s[{64+2*i}:{65+2*i}]")
    def stamp_out(n=8):
        if not stamps: return
        a("s_waitcnt lgkmcnt(0)")
        a("s_mov_b64 exec, 1")
        a("s_lshl_b32 s7, s2, 3"); a("s_add_u32 s7, s7, s3"); a("s_lshl_b32 s7, s7, 5")
        a(f"s_add_u32 s7, s7, {STAMP}")
        a("v_mov_b32 v20, 0")
        for i in range(8): a(f"v_mov_b32 v{24+i}, s{64+2*i}")
        a("buffer_store_dwordx4 v[24:27], v20, s[52:55], s7 offen")
        a("buffer_store_dwordx4 v[28:31], v20, s[52:55], s7 offen offset:16")
    if stamps:
        for i in range(1, 8): a(f"s_mov_b32 s{64+2*i}, 0")
    stamp(0)
    a("""
    s_cmp_ge_u32 s2, 256
    s_cbranch_scc1 L_end
    s_load_dwordx16 s[16:31], s[0:1], 0
    s_load_dwordx8 s[32:39], s[0:1], 64
    s_load_dwordx2 s[40:41], s[0:1], 96
    v_lshrrev_b32 v1, 6, v0
    v_and_b32 v0, 63, v0
    v_readfirstlane_b32 s3, v1
    s_and_b32 s4, s2, 7
    s_lshl_b32 s4, s4, 1
    s_lshr_b32 s5, s2, 7
    s_add_u32 s4, s4, s5
    s_bfe_u32 s5, s2, 0x40003           ; j = (wg>>3)&15
    s_lshl_b32 s6, s4, 4
    s_add_u32 s6, s6, s5                ; wslot = h*16 + j
    v_lshrrev_b32 v1, 4, v0             ; g
    v_and_b32 v2, 15, v0                ; n
    v_lshlrev_b32 v3, 4, v0             ; lane*16
    v_and_b32 v8, 1, v0
    v_lshlrev_b32 v8, 4, v8
    v_mov_b32 v9, 0xffff
    v_lshlrev_b32 v8, v8, v9            ; 0xffff << 16*(n&1)
    v_bfe_u32 v9, v0, 1, 2              ; (n&7)>>1
    v_cmp_eq_u32 vcc, 0, v9
    v_cndmask_b32 v4, 0, v8, vcc
    v_cmp_eq_u32 vcc, 1, v9
    v_cndmask_b32 v5, 0, v8, vcc
    v_cmp_eq_u32 vcc, 2, v9
    v_cndmask_b32 v6, 0, v8, vcc
    v_cmp_eq_u32 vcc, 3, v9
    v_cndmask_b32 v7, 0, v8, vcc
    v_lshrrev_b32 v8, 1, v1
    v_lshlrev_b32 v8, 9, v8
    v_lshl_add_u32 v8, v2, 5, v8
    v_and_b32 v9, 1, v1
    v_lshl_add_u32 v8, v9, 4, v8
    s_mov_b32 s47, 0x20000
    s_mov_b32 s51, 0x20000
    s_mov_b32 s55, 0x20000
    s_mov_b32 s59, 0x20000
    s_mov_b32 s63, 0x20000
    """)
    a(f"s_mov_b32 s54, {WS_REC}")
    a("s_mov_b32 s58, 256")
    a("s_mov_b32 s62, 2304")
    a(f"s_mul_i32 s8, s6, {SLOT}")
    a("""
    s_waitcnt lgkmcnt(0)
    s_mov_b32 s52, s40
    s_mov_b32 s53, s41
    s_mov_b32 s56, s38
    s_mov_b32 s57, s39
    s_mov_b32 s60, s36
    s_mov_b32 s61, s37
    s_cmp_ge_u32 s3, 4
    s_cbranch_scc1 L_stream
    s_cmp_eq_u32 s3, 0
    s_cbranch_scc0 L_oproj
    """)
    XR = 10
    WB = 20
    AB = 164
    D0, D1 = 236, 240
    a("""
    s_cmp_ge_u32 s5, 8
    s_cselect_b32 s48, s26, s16         ; x
    s_cselect_b32 s49, s27, s17
    s_cselect_b32 s44, s32, s22         ; wq
    s_cselect_b32 s45, s33, s23
    s_mov_b32 s50, 1152
    s_mov_b32 s46, 4718592
    s_and_b32 s9, s5, 7                 ; slice
    s_mul_i32 s10, s9, 72
    v_mul_u32_u24 v9, 18, v1
    v_add_u32 v9, s10, v9
    v_lshlrev_b32 v244, 1, v9
    v_lshlrev_b32 v9, 13, v9
    v_lshl_add_u32 v9, v2, 4, v9        ; + 16*n
    s_lshl_b32 s10, s4, 9               ; 512*h
    buffer_load_dwordx4 v[10:13], v244, s[48:51], 0 offen
    buffer_load_dwordx4 v[14:17], v244, s[48:51], 0 offen offset:16
    buffer_load_dword v18, v244, s[48:51], 0 offen offset:32
    """)
    for t in range(18):
        for hf in range(2):
            r = WB + 4 * (2 * t + hf)
            a(f"buffer_load_dwordx4 v[{r}:{r+3}], v9, s[44:47], s10 offen offset:{256*hf} {wld}")
        if t < 17: a("s_add_u32 s10, s10, 8192")
    a("s_barrier")
    stamp(1)
    a("v_mov_b32 v248, -1\nv_mov_b32 v249, -1\nv_mov_b32 v250, -1\nv_mov_b32 v251, -1")
    for i in range(4):
        a(f"buffer_store_dwordx4 v[248:251], v3, s[52:55], s8 offen offset:{1024*i} sc1")
    a("s_mov_b32 s11, 0x01000100\ns_mov_b32 s12, 0x03020302")
    a(f"s_waitcnt vmcnt({36+4})")
    for t in range(18):
        sel = "s12" if t & 1 else "s11"
        a(f"v_perm_b32 v245, v{XR + t//2}, v{XR + t//2}, {sel}")
        for r in range(4):
            a(f"v_and_b32 v{AB+4*t+r}, v245, v{4+r}")
    for t in range(18):
        for hf in range(2):
            i = 2 * t + hf
            r = WB + 4 * i
            d = D1 if hf else D0
            a(f"s_waitcnt vmcnt({35 - i + 4})")
            c = "0" if t == 0 else f"v[{d}:{d+3}]"
            a(f"v_mfma_f32_16x16x32_bf16 v[{d}:{d+3}], v[{AB+4*t}:{AB+4*t+3}], v[{r}:{r+3}], {c}")
    a("v_cmp_gt_u32 vcc, 2, v1")
    for i in range(4):
        a(f"v_cndmask_b32 v{D0+i}, v{D1+i}, v{D0+i}, vcc")
    a(f"s_lshl_b32 s10, s6, 10\ns_add_u32 s10, s10, {QP}")
    a(f"buffer_store_dwordx4 v[{D0}:{D0+3}], v8, s[52:55], s10 offen sc1")
    a("""
    v_mov_b32 v245, 1
    v_mov_b32 v246, s2
    v_lshlrev_b32 v247, 2, v0
    s_waitcnt vmcnt(0)
    """)
    stamp(2)
    a("""
    s_mov_b64 exec, 1
    buffer_store_byte v245, v246, s[56:59], 0 offen sc1
    s_mov_b64 exec, -1
    s_mov_b32 s13, 0x01010101
    """)
    a(f"s_mov_b32 s14, {spin}")
    a("""
L_poll_flags:
    buffer_load_dword v245, v247, s[56:59], 0 offen sc1
    s_waitcnt vmcnt(0)
    v_cmp_ne_u32 vcc, s13, v245
    s_cbranch_vccz L_flags_ok
    s_sleep 2
    s_sub_u32 s14, s14, 1
    s_cmp_lg_u32 s14, 0
    s_cbranch_scc1 L_poll_flags
L_flags_ok:
    """)
    stamp(3)
    a("""
    s_cmp_lt_u32 s5, 13
    s_cselect_b32 s10, 8, 0
    s_lshl_b32 s9, s4, 4
    s_add_u32 s10, s10, s9
    s_lshl_b32 s10, s10, 10
    """)
    a(f"s_add_u32 s10, s10, {QP}\ns_add_u32 s9, s10, 4096")
    for i in range(8):
        r = WB + 4 * i
        a(f"buffer_load_dwordx4 v[{r}:{r+3}], v3, s[52:55], {'s10' if i < 4 else 's9'} offen offset:{1024*(i&3)} sc1")
    a("v_lshlrev_b32 v247, 3, v0")
    for i in range(1, 8):
        a(f"s_waitcnt vmcnt({7-i})")
        for k in range(4):
            a(f"v_add_f32 v{WB+k}, v{WB+k}, v{WB+4*i+k}")
    a(f"v_cvt_pk_bf16_f32 v{WB+4}, v{WB}, v{WB+1}")
    a(f"v_cvt_pk_bf16_f32 v{WB+5}, v{WB+2}, v{WB+3}")
    a(f"ds_write_b64 v247, v[{WB+4}:{WB+5}] offset:{L_Q}")
    a("s_waitcnt lgkmcnt(0)")
    stamp(4)
    a("s_barrier")
    a("s_barrier")
    a("s_barrier")
    a("v_lshlrev_b32 v9, 6, v2")
    for i in range(4): a(f"ds_read_b128 v[{20+4*i}:{23+4*i}], v9 offset:{L_M+16*i}")
    for i in range(4): a(f"ds_read_b128 v[{36+4*i}:{39+4*i}], v9 offset:{L_L+16*i}")
    a("s_waitcnt lgkmcnt(4)")
    a("v_max3_f32 v20, v20, v21, v22")
    for i in range(23, 35, 2): a(f"v_max3_f32 v20, v20, v{i}, v{i+1}")
    a("v_max_f32 v20, v20, v35")
    a("s_waitcnt lgkmcnt(0)")
    a("v_add_f32 v21, v36, v37")
    for i in range(38, 52): a(f"v_add_f32 v21, v21, v{i}")
    a("""
    s_mov_b64 exec, 0x101
    buffer_store_dwordx2 v[20:21], v2, s[52:55], s8 offen offset:1024 sc1
    s_mov_b64 exec, -1
    """)
    a("s_barrier")
    stamp(5)
    for i in range(4): a(f"ds_read_b128 v[{20+4*i}:{23+4*i}], v3 offset:{L_O+1024*i}")
    a("s_waitcnt lgkmcnt(2)")
    for k in range(4): a(f"v_add_f32 v{20+k}, v{20+k}, v{24+k}")
    a("s_waitcnt lgkmcnt(0)")
    for k in range(4): a(f"v_add_f32 v{28+k}, v{28+k}, v{32+k}")
    for k in range(4): a(f"v_add_f32 v{20+k}, v{20+k}, v{28+k}")
    a("buffer_store_dwordx4 v[20:23], v3, s[52:55], s8 offen sc1")
    if stamps:
        a("s_waitcnt vmcnt(0)")
        stamp(6)
    stamp_out()
    a("s_endpgm")
    WO = 20
    a("""
L_oproj:
    s_cmp_ge_u32 s5, 8
    s_cselect_b32 s44, s34, s24         ; wo
    s_cselect_b32 s45, s35, s25
    s_cselect_b32 s12, 0, 13
    s_cselect_b32 s13, 13, 3
    s_mov_b32 s46, 4718592
    s_and_b32 s9, s5, 7                 ; slice
    s_lshl_b32 s10, s4, 8
    s_lshl_b32 s11, s9, 5
    s_add_u32 s10, s10, s11             ; R0 = 256h + 32 slice
    s_mul_i32 s10, s10, 1152
    s_sub_u32 s11, s3, 1
    s_mul_i32 s14, s11, 384
    s_add_u32 s10, s10, s14
    v_lshrrev_b32 v9, 3, v0             ; e = 2g + (n>>3) = lane>>3
    v_and_b32 v10, 7, v0                ; n&7
    v_mul_u32_u24 v11, 4608, v9
    v_lshl_add_u32 v11, v10, 4, v11
    s_lshl_b32 s15, s4, 4
    s_add_u32 s15, s15, s12
    """)
    a(f"s_mul_i32 s15, s15, {SLOT}")
    a(f"v_mul_u32_u24 v12, {SLOT}, v10")
    a("""
    s_lshl_b32 s42, s9, 7               ; 128*slice
    v_lshl_add_u32 v13, v9, 4, v12      ; + 16 e
    v_add_u32 v13, s42, v13
    s_lshr_b32 s42, s9, 2
    s_lshl_b32 s42, s42, 3
    s_add_u32 s42, s42, 1024
    v_add_u32 v14, s42, v12
    """)
    a(f"v_add_u32 v15, {8*SLOT}, v13")
    a(f"v_add_u32 v16, {8*SLOT}, v14")
    a(f"v_mov_b32 v17, {OOB}")
    a("""
    v_cmp_gt_u32 s[80:81], s13, v10
    v_add_u32 v18, 8, v10
    v_cmp_gt_u32 s[82:83], s13, v18
    v_cndmask_b32 v13, v17, v13, s[80:81]
    v_cndmask_b32 v14, v17, v14, s[80:81]
    v_cndmask_b32 v15, v17, v15, s[82:83]
    v_cndmask_b32 v16, v17, v16, s[82:83]
    v_lshrrev_b32 v18, 1, v1
    v_lshlrev_b32 v18, 8, v18
    v_lshl_add_u32 v18, v2, 5, v18
    v_and_b32 v19, 1, v1
    v_lshl_add_u32 v18, v19, 4, v18
    s_mul_i32 s43, s11, 768
    s_add_u32 s43, s43, s8
    s_barrier
    s_barrier
    s_barrier
    s_barrier
    """)
    stamp(1)
    for t in range(4):
        for cb in range(3):
            r = WO + 4 * (3 * t + cb)
            a(f"buffer_load_dwordx4 v[{r}:{r+3}], v11, s[44:47], s10 offen offset:{1152*t+128*cb} {wld}")
    a("s_barrier")
    stamp(2)
    a(f"s_mov_b32 s14, {spin}")
    G = 68
    a(f"""
L_poll_o:
    buffer_load_dwordx4 v[{G}:{G+3}], v13, s[52:55], s15 offen sc1
    buffer_load_dwordx4 v[{G+4}:{G+7}], v15, s[52:55], s15 offen sc1
    buffer_load_dwordx2 v[{G+8}:{G+9}], v14, s[52:55], s15 offen sc1
    buffer_load_dwordx2 v[{G+10}:{G+11}], v16, s[52:55], s15 offen sc1
    s_waitcnt vmcnt(0)
    v_max3_u32 v80, v{G}, v{G+1}, v{G+2}
    v_max3_u32 v81, v{G+3}, v{G+4}, v{G+5}
    v_max3_u32 v80, v80, v{G+6}, v{G+7}
    v_max3_u32 v81, v81, v{G+8}, v{G+9}
    v_max3_u32 v80, v80, v{G+10}, v{G+11}
    v_max_u32 v80, v80, v81
    v_cmp_eq_u32 vcc, -1, v80
    s_cbranch_vccz L_o_ok
    s_sub_u32 s14, s14, 1
    s_cmp_lg_u32 s14, 0
    s_cbranch_scc1 L_poll_o
L_o_ok:
    """)
    stamp(3)
    DP = "row_mask:0xf bank_mask:0xf"
    a(f"""
    v_mov_b32 v80, 0xff800000
    v_cndmask_b32 v{G+8}, v80, v{G+8}, s[80:81]
    v_cndmask_b32 v{G+10}, v80, v{G+10}, s[82:83]
    v_max_f32 v80, v{G+8}, v{G+10}
    v_max_f32_dpp v80, v80, v80 quad_perm:[1,0,3,2] {DP}
    v_max_f32_dpp v80, v80, v80 quad_perm:[2,3,0,1] {DP}
    v_max_f32_dpp v80, v80, v80 row_half_mirror {DP}
    v_sub_f32 v{G+8}, v{G+8}, v80
    v_sub_f32 v{G+10}, v{G+10}, v80
    v_exp_f32 v{G+8}, v{G+8}
    v_exp_f32 v{G+10}, v{G+10}
    v_mul_f32 v{G+9}, v{G+8}, v{G+9}
    v_fmac_f32 v{G+9}, v{G+10}, v{G+11}
    """)
    for k in range(4): a(f"v_mul_f32 v{G+k}, v{G+8}, v{G+k}")
    for k in range(4): a(f"v_fmac_f32 v{G+k}, v{G+10}, v{G+4+k}")
    for pat in ("quad_perm:[1,0,3,2]", "quad_perm:[2,3,0,1]", "row_half_mirror"):
        for r in (G+9, G, G+1, G+2, G+3):
            a(f"v_add_f32_dpp v{r}, v{r}, v{r} {pat} {DP}")
    a(f"v_rcp_f32 v{G+9}, v{G+9}")
    for k in range(4): a(f"v_mul_f32 v{G+k}, v{G+9}, v{G+k}")
    for k in range(4): a(f"v_cvt_pk_bf16_f32 v{G+k}, v{G+k}, v{G+k}")
    AO = 84
    DO = 100
    for t in range(4):
        for r in range(4): a(f"v_and_b32 v{AO+4*t+r}, v{G+t}, v{4+r}")
    for t in range(4):
        for cb in range(3):
            r = WO + 4 * (3 * t + cb); d = DO + 4 * cb
            c = "0" if t == 0 else f"v[{d}:{d+3}]"
            a(f"v_mfma_f32_16x16x32_bf16 v[{d}:{d+3}], v[{AO+4*t}:{AO+4*t+3}], v[{r}:{r+3}], {c}")
    for i in range(4): a(f"v_permlane32_swap_b32 v{DO+i}, v{DO+4+i}")
    for i in range(4): a(f"v_permlane32_swap_b32 v{DO+8+i}, v{DO+12+i}")
    for i in range(4): a(f"v_add_f32_dpp v{DO+i}, v{DO+4+i}, v{DO+i} row_ror:8 {DP}")
    for i in range(4): a(f"v_add_f32_dpp v{DO+8+i}, v{DO+12+i}, v{DO+8+i} row_ror:8 {DP}")
    a(f"""
    s_mov_b32 exec_lo, 0x00ff00ff
    s_mov_b32 exec_hi, 0x00ff00ff
    buffer_store_dwordx4 v[{DO}:{DO+3}], v18, s[52:55], s43 offen offset:{YOFF} sc1
    s_mov_b32 exec_hi, 0
    buffer_store_dwordx4 v[{DO+8}:{DO+11}], v18, s[52:55], s43 offen offset:{YOFF+512} sc1
    """)
    if stamps:
        stamp(4)
        a("s_waitcnt vmcnt(0)")
        stamp(5)
    stamp_out()
    a("s_endpgm")
    KB = 12
    SB = KB + 4 * NU
    QR = 228
    DT = 232
    vK, vV = 9, 10
    def K(u): return f"v[{KB+4*u}:{KB+4*u+3}]"
    a("""
L_stream:
    s_sub_u32 s9, s3, 4                 ; sw
    s_cmp_lt_u32 s5, 13
    s_cselect_b32 s44, s28, s18         ; K
    s_cselect_b32 s45, s29, s19
    s_cselect_b32 s48, s30, s20         ; V
    s_cselect_b32 s49, s31, s21
    s_cselect_b32 s10, 0, 13
    s_movk_i32 s11, 128
    s_cselect_b32 s11, 512, s11
    s_mov_b32 s12, 1431655766
    s_cselect_b32 s12, 330382100, s12
    s_cselect_b32 s13, 0, 0x180000
    s_sub_u32 s10, s5, s10
    s_lshl_b32 s10, s10, 2
    s_add_u32 s10, s10, s9
    s_mul_i32 s14, s10, s11
    s_add_u32 s15, s14, s11
    s_mul_hi_u32 s14, s14, s12
    s_mul_hi_u32 s15, s15, s12
    s_sub_u32 s15, s15, s14
    s_lshl_b32 s14, s14, 10
    s_add_u32 s14, s14, s13
    s_lshl_b32 s13, s4, 21
    s_add_u32 s14, s14, s13
    s_add_u32 s44, s44, s14
    s_addc_u32 s45, s45, 0
    s_add_u32 s48, s48, s14
    s_addc_u32 s49, s49, 0
    s_lshl_b32 s46, s15, 10
    s_mov_b32 s50, s46
    v_bfe_u32 v9, v0, 2, 2
    v_lshlrev_b32 v9, 8, v9
    v_lshl_add_u32 v9, v1, 6, v9
    v_and_b32 v10, 3, v0
    v_lshl_add_u32 v9, v10, 4, v9
    v_bfe_u32 v11, v0, 3, 1
    v_lshlrev_b32 v11, 8, v11
    v_lshl_add_u32 v11, v1, 6, v11
    v_lshl_add_u32 v11, v10, 4, v11
    v_mov_b32 v10, v3
    s_barrier
    """)
    issued = []
    def issue(kind, u):
        vo = vK if kind == "k" else vV
        srd = "s[44:47]" if kind == "k" else "s[48:51]"
        a(f"buffer_load_dwordx4 {K(u)}, v{vo}, {srd}, 0 offen offset:{(u&3)*1024} {ld}")
        if (u & 3) == 3: a(f"v_add_u32 v{vo}, 0x1000, v{vo}")
        issued.append((kind, u))
    def wait(kind, u):
        n = len(issued) - 1 - issued.index((kind, u))
        assert n <= 63
        a(f"s_waitcnt vmcnt({n})")
    for u in range(NU): issue("k", u)
    for u in range(39, NU):
        a(f"s_cmp_gt_u32 s15, {u}")
        a(f"s_cselect_b32 s{84+u-39}, 0, 0xff800000")
    stamp(1)
    a("s_barrier")
    stamp(2)
    a(f"ds_read_b128 v[{QR}:{QR+3}], v11 offset:{L_Q}")
    a("s_waitcnt lgkmcnt(0)")
    groups = [list(range(i, min(i + 3, NU))) for i in range(0, NU, 3)]
    nv = 0
    def dpp_group(gi):
        us = groups[gi]
        for step in range(4):
            for k, u in enumerate(us):
                d = DT + 12 * (gi & 1) + 4 * k
                if step == 0:
                    a(f"v_mov_b32_dpp v{SB+u}, v{d} quad_perm:[0,0,0,0] {DP}")
                else:
                    q = step
                    a(f"v_add_f32_dpp v{SB+u}, v{d+step}, v{SB+u} quad_perm:[{q},{q},{q},{q}] {DP}")
    for gi, us in enumerate(groups):
        wait("k", us[-1])
        for k, u in enumerate(us):
            d = DT + 12 * (gi & 1) + 4 * k
            a(f"v_mfma_f32_16x16x32_bf16 v[{d}:{d+3}], {K(u)}, v[{QR}:{QR+3}], 0")
        done = us[-1] + 1
        want = min(done, first11) + max(0, done - first11) // vgap
        while nv < want:
            issue("v", nv); nv += 1
        if gi > 0: dpp_group(gi - 1)
    dpp_group(len(groups) - 1)
    for u in range(39, NU): a(f"v_add_f32 v{SB+u}, s{84+u-39}, v{SB+u}")
    M = DT
    a(f"v_max3_f32 v{M}, v{SB}, v{SB+1}, v{SB+2}")
    for u in range(3, NU, 2): a(f"v_max3_f32 v{M}, v{M}, v{SB+u}, v{SB+u+1}")
    c = (128 ** -0.5) * math.log2(math.e)
    a(f"s_mov_b32 s13, {f32bits(c):#x}")
    a(f"v_mul_f32 v{M}, s13, v{M}")
    a(f"""
    s_lshl_b32 s12, s9, 4
    v_lshlrev_b32 v11, 6, v2
    v_lshl_add_u32 v{M+1}, v1, 2, v11
    v_add_u32 v{M+1}, s12, v{M+1}
    ds_write_b32 v{M+1}, v{M} offset:{L_M}
    s_waitcnt lgkmcnt(0)
    """)
    stamp(3)
    a("s_barrier")
    for i in range(4): a(f"ds_read_b128 v[{M+4+4*i}:{M+7+4*i}], v11 offset:{L_M+16*i}")
    issue("v", nv); nv += 1
    a("s_waitcnt lgkmcnt(0)")
    a(f"v_max3_f32 v{M}, v{M+4}, v{M+5}, v{M+6}")
    for i in range(M+7, M+19, 2): a(f"v_max3_f32 v{M}, v{M}, v{i}, v{i+1}")
    a(f"v_max_f32 v{M}, v{M}, v{M+19}")
    Lr = M + 2
    for u0 in range(0, NU, 4):
        us = list(range(u0, min(u0 + 4, NU)))
        for u in us: a(f"v_fma_f32 v{SB+u}, v{SB+u}, s13, -v{M}")
        for u in us: a(f"v_exp_f32 v{SB+u}, v{SB+u}")
        for u in us:
            if u == 0: a(f"v_mov_b32 v{Lr}, v{SB}")
            else: a(f"v_add_f32 v{Lr}, v{Lr}, v{SB+u}")
        for u in us: a(f"v_cvt_pk_bf16_f32 v{SB+u}, v{SB+u}, v{SB+u}")
        if (u0 // 4) % 3 == 2 and nv < NU:
            issue("v", nv); nv += 1
    a(f"ds_write_b32 v{M+1}, v{Lr} offset:{L_L}")
    ACC = M + 4; P0 = M + 8
    b3done = False
    for u in range(NU):
        while nv < min(NU, u + D):
            issue("v", nv); nv += 1
        if nv == NU and not b3done:
            a("s_waitcnt lgkmcnt(0)")
            stamp(4)
            a("s_barrier")
            b3done = True
        p = P0 + 4 * (u & 1)
        for r in range(4): a(f"v_and_b32 v{p+r}, v{SB+u}, v{4+r}")
        wait("v", u)
        cc = "0" if u == 0 else f"v[{ACC}:{ACC+3}]"
        a(f"v_mfma_f32_16x16x32_bf16 v[{ACC}:{ACC+3}], v[{p}:{p+3}], {K(u)}, {cc}")
    assert b3done
    a("s_lshl_b32 s12, s9, 10")
    a("v_add_u32 v8, s12, v8")
    a(f"ds_write_b128 v8, v[{ACC}:{ACC+3}] offset:{L_O}")
    a("s_waitcnt lgkmcnt(0)")
    stamp(5)
    a("s_barrier")
    a("""
    s_lshl_b32 s10, s9, 8
    s_add_u32 s10, s10, s2              ; unit
    s_cmp_ge_u32 s10, 288
    s_cbranch_scc1 L_sdone
    s_cmp_ge_u32 s10, 144
    s_cselect_b32 s11, 144, 0
    """)
    a(f"s_cselect_b32 s12, {8*SLOT}, 0")
    a(f"""
    s_sub_u32 s11, s10, s11
    s_lshl_b32 s11, s11, 4
    s_add_u32 s11, s11, s12
    s_add_u32 s11, s11, {YOFF}
    s_add_u32 s12, s11, {128*SLOT}
    v_lshrrev_b32 v9, 3, v0
    v_lshlrev_b32 v9, 4, v9
    v_and_b32 v10, 7, v0
    v_add_u32 v9, v9, v10
    v_mul_u32_u24 v9, {SLOT}, v9
    s_mov_b32 s14, {spin}
L_poll_y:
    buffer_load_dwordx4 v[12:15], v9, s[52:55], s11 offen sc1
    buffer_load_dwordx4 v[16:19], v9, s[52:55], s12 offen sc1
    s_waitcnt vmcnt(0)
    v_max3_u32 v20, v12, v13, v14
    v_max3_u32 v21, v15, v16, v17
    v_max3_u32 v20, v20, v18, v19
    v_max_u32 v20, v20, v21
    v_cmp_eq_u32 vcc, -1, v20
    s_cbranch_vccz L_y_ok
    s_sleep 1
    s_sub_u32 s14, s14, 1
    s_cmp_lg_u32 s14, 0
    s_cbranch_scc1 L_poll_y
L_y_ok:
    """)
    stamp(6)
    for k in range(4): a(f"v_add_f32 v{12+k}, v{12+k}, v{16+k}")
    a(f"""
    v_permlane32_swap_b32 v12, v13
    v_permlane32_swap_b32 v14, v15
    v_add_f32 v12, v12, v13
    v_add_f32 v14, v14, v15
    v_permlane16_swap_b32 v12, v14
    v_add_f32 v12, v12, v14
    v_add_f32_dpp v12, v12, v12 row_ror:8 {DP}
    v_add_f32_dpp v12, v12, v12 row_ror:4 {DP}
    v_add_f32_dpp v12, v12, v12 row_ror:2 {DP}
    v_add_f32_dpp v12, v12, v12 row_ror:1 {DP}
    v_cvt_pk_bf16_f32 v12, v12, v12
    v_lshrrev_b32 v13, 1, v1
    v_and_b32 v14, 1, v1
    v_lshl_add_u32 v13, v14, 1, v13
    v_lshlrev_b32 v13, 1, v13
    s_lshl_b32 s10, s10, 3
    s_mov_b32 exec_lo, 0x00010001
    s_mov_b32 exec_hi, 0x00010001
    buffer_store_short v12, v13, s[60:63], s10 offen
L_sdone:
    """)
    if stamps:
        a("s_waitcnt vmcnt(0)")
        stamp(7)
    stamp_out()
    a("L_end:")
    a("s_endpgm")
    a.raw('.section .rodata,"a"'); a.raw(".p2align 6"); a.raw(f".amdhsa_kernel {NAME}_kernel")
    a.raw("  .amdhsa_next_free_vgpr 256"); a.raw("  .amdhsa_next_free_sgpr 96"); a.raw("  .amdhsa_accum_offset 256")
    a.raw("  .amdhsa_group_segment_fixed_size 0"); a.raw("  .amdhsa_kernarg_size 104"); a.raw("  .amdhsa_user_sgpr_count 2")
    a.raw("  .amdhsa_user_sgpr_kernarg_segment_ptr 1"); a.raw("  .amdhsa_system_sgpr_workgroup_id_x 1"); a.raw(".end_amdhsa_kernel")
    return a.text()

if __name__ == "__main__":
    import argparse
    ap = argparse.ArgumentParser()
    ap.add_argument("-o", default="cdna_kernels/" + NAME + ".s")
    ap.add_argument("--ld", default="nt"); ap.add_argument("--stamps", action="store_true")
    args = ap.parse_args()
    open(args.o, "w").write(gen(ld=args.ld, stamps=args.stamps))
```

```python
import sys, math, struct
sys.path.insert(0, "gen")
from asmlib import Asm

NAME = "concat_heads__sliding_block_cached__gqa_block_cached__decode"
HDR = open("cdna_kernels/" + NAME + ".s.ref").read().split("; Override launch")[0]

def f32bits(x): return struct.unpack("<I", struct.pack("<f", x))[0]

SLOT = 4352
YOFF = 1280
QP = 4096
EPOCH = 0
SB0 = 4096 + 262144
WS_REC = 16 << 20
STAMP = 8 << 20
NU = 43
L_Q, L_M, L_L, L_O = 0, 512, 1536, 2560
LDS_BYTES = 6656
DP = "row_mask:0xf bank_mask:0xf"

def gen(ld="nt", stamps=False, D=8, spin=200000, wld=None, wolead=2, qsleep=4, diag='', D0=12):
    wld = ld if wld is None else wld
    a = Asm()
    a.raw(HDR.rstrip("\n"))
    a.raw(f"; @launch grid=(256,1,1) block=(512,1,1) lds={LDS_BYTES}")
    a.raw('.amdgcn_target "amdgcn-amd-amdhsa--gfx950"')
    a.raw(".text"); a.raw(f".globl {NAME}_kernel"); a.raw(".p2align 8"); a.raw(f".type {NAME}_kernel,@function")
    a.label(f"{NAME}_kernel")
    def stamp(i):
        if 'p' in diag and i >= 4: return
        if stamps: a(f"s_memrealtime s[{64+2*i}:{65+2*i}]")
    def stamp_out():
        if not stamps: return
        a("s_waitcnt lgkmcnt(0)")
        a("s_mov_b64 exec, 1")
        a("s_lshl_b32 s7, s2, 3"); a("s_add_u32 s7, s7, s3"); a("s_lshl_b32 s7, s7, 5")
        a(f"s_add_u32 s7, s7, {STAMP}")
        a("v_mov_b32 v20, 0")
        for i in range(8): a(f"v_mov_b32 v{24+i}, s{64+2*i}")
        a("buffer_store_dwordx4 v[24:27], v20, s[52:55], s7 offen")
        a("buffer_store_dwordx4 v[28:31], v20, s[52:55], s7 offen offset:16")
    def tagcheck(regs, acc):
        a(f"v_xor_b32 v{acc}, s42, v{regs[0]}")
        for r in regs[1:]:
            a(f"v_bitop3_b32 v{acc}, v{r}, s42, v{acc} bitop3:0xbe")
        a(f"v_and_b32 v{acc}, 0xff, v{acc}")
        a(f"v_cmp_ne_u32 vcc, 0, v{acc}")
    def masks():
        a("""
    v_and_b32 v8, 1, v0
    v_lshlrev_b32 v8, 4, v8
    v_mov_b32 v7, 0xffff
    v_lshlrev_b32 v8, v8, v7            ; 0xffff << 16*(n&1)
    v_bfe_u32 v7, v0, 1, 2              ; (n&7)>>1
    v_cmp_eq_u32 vcc, 0, v7
    v_cndmask_b32 v4, 0, v8, vcc
    v_cmp_eq_u32 vcc, 1, v7
    v_cndmask_b32 v5, 0, v8, vcc
    v_cmp_eq_u32 vcc, 2, v7
    v_cndmask_b32 v6, 0, v8, vcc
    v_cmp_eq_u32 vcc, 3, v7
    v_cndmask_b32 v7, 0, v8, vcc
    """)
    def common2():
        a(f"""
    s_load_dword s42, s[40:41], {EPOCH}
    s_mov_b32 s52, s40
    s_mov_b32 s53, s41
    s_mov_b32 s54, {WS_REC}
    s_mov_b32 s55, 0x20000
    s_lshl_b32 s6, s4, 4
    s_add_u32 s6, s6, s5                ; wslot = h*16 + j
    s_mul_i32 s8, s6, {SLOT}
    s_add_u32 s8, s8, {SB0}
    v_lshlrev_b32 v3, 4, v0             ; lane*16
    """)
        masks()
    def gettag():
        a("""
    s_waitcnt lgkmcnt(0)
    s_add_u32 s43, s42, 1
    s_and_b32 s42, s43, 0xff
    """)
    if stamps:
        for i in range(1, 8): a(f"s_mov_b32 s{64+2*i}, 0")
    stamp(0)
    KB = 12
    SB = KB + 4 * NU
    QR = 228
    DT = 232
    vK, vV = 9, 10
    def K(u): return f"v[{KB+4*u}:{KB+4*u+3}]"
    a("""
    s_load_dwordx16 s[16:31], s[0:1], 0
    s_load_dwordx8 s[32:39], s[0:1], 64
    s_load_dwordx2 s[40:41], s[0:1], 96
    s_cmp_ge_u32 s2, 256
    s_cbranch_scc1 L_end
    v_lshrrev_b32 v1, 6, v0
    v_and_b32 v0, 63, v0
    v_readfirstlane_b32 s3, v1
    s_and_b32 s4, s2, 7
    s_lshl_b32 s4, s4, 1
    s_lshr_b32 s5, s2, 7
    s_add_u32 s4, s4, s5
    s_bfe_u32 s5, s2, 0x40003           ; j = (wg>>3)&15
    v_lshrrev_b32 v1, 4, v0             ; g
    v_and_b32 v2, 15, v0                ; n
    s_mov_b32 s47, 0x20000
    s_mov_b32 s51, 0x20000
    s_cmp_lt_u32 s3, 4
    s_cbranch_scc1 L_help
    s_sub_u32 s9, s3, 4                 ; sw
    s_cmp_lt_u32 s5, 13
    s_cselect_b32 s10, 0, 13
    s_movk_i32 s11, 128
    s_cselect_b32 s11, 512, s11
    s_mov_b32 s12, 1431655766
    s_cselect_b32 s12, 330382100, s12
    s_cselect_b32 s13, 0, 0x180000
    s_sub_u32 s10, s5, s10
    s_lshl_b32 s10, s10, 2
    s_add_u32 s10, s10, s9
    s_mul_i32 s14, s10, s11
    s_add_u32 s15, s14, s11
    s_mul_hi_u32 s14, s14, s12
    s_mul_hi_u32 s15, s15, s12
    s_sub_u32 s15, s15, s14
    s_lshl_b32 s14, s14, 10
    s_add_u32 s14, s14, s13
    s_lshl_b32 s13, s4, 21
    s_add_u32 s14, s14, s13
    s_lshl_b32 s46, s15, 10
    v_bfe_u32 v9, v0, 2, 2
    v_lshlrev_b32 v9, 8, v9
    v_lshl_add_u32 v9, v1, 6, v9
    v_and_b32 v10, 3, v0
    v_lshl_add_u32 v9, v10, 4, v9
    s_cmp_lt_u32 s5, 13
    s_waitcnt lgkmcnt(0)
    s_cselect_b32 s44, s28, s18         ; K
    s_cselect_b32 s45, s29, s19
    s_cselect_b32 s48, s30, s20         ; V
    s_cselect_b32 s49, s31, s21
    s_add_u32 s44, s44, s14
    s_addc_u32 s45, s45, 0
    """)
    issued = []
    def issue(kind, u):
        vo = vK if kind == "k" else vV
        srd = "s[44:47]" if kind == "k" else "s[48:51]"
        a(f"buffer_load_dwordx4 {K(u)}, v{vo}, {srd}, 0 offen offset:{(u&3)*1024} {ld}")
        if (u & 3) == 3: a(f"v_add_u32 v{vo}, 0x1000, v{vo}")
        issued.append((kind, u))
    def wait(kind, u):
        n = len(issued) - 1 - issued.index((kind, u))
        assert n <= 63
        a(f"s_waitcnt vmcnt({n})")
    for u in range(D0): issue("k", u)
    a("s_branch L_stream")
    XR = 12; WB = 20; AB = 56; DQ = 92
    a("""
L_help:
    s_and_b32 s9, s5, 7                 ; slice
    s_mul_i32 s10, s9, 72
    v_lshrrev_b32 v9, 3, v0             ; e
    v_and_b32 v10, 7, v0                ; n&7
    v_mul_u32_u24 v11, 9, v9
    v_add_u32 v11, s10, v11
    v_and_b32 v18, -2, v11
    v_lshlrev_b32 v18, 1, v18
    v_lshlrev_b32 v11, 13, v11
    v_lshl_add_u32 v11, v10, 4, v11
    s_lshl_b32 s10, s4, 9
    s_lshl_b32 s11, s3, 7
    s_add_u32 s10, s10, s11             ; 512*h + 128*hw
    s_mov_b32 s50, 1152
    s_mov_b32 s46, 4718592
    s_cmp_ge_u32 s5, 8
    s_waitcnt lgkmcnt(0)
    s_cselect_b32 s44, s32, s22         ; wq
    s_cselect_b32 s45, s33, s23
    s_cselect_b32 s48, s26, s16         ; x
    s_cselect_b32 s49, s27, s17
    buffer_load_dwordx4 v[12:15], v18, s[48:51], 0 offen
    buffer_load_dword v16, v18, s[48:51], 0 offen offset:16
    """)
    for t in range(9):
        r = WB + 4 * t
        a(f"buffer_load_dwordx4 v[{r}:{r+3}], v11, s[44:47], s10 offen {wld}")
        if t < 8 and 'w' not in diag: a("s_add_u32 s10, s10, 0x2000")
    stamp(1)
    common2()
    NT = 0
    if 't' in diag:
        NT = 2
        a(f"""
    s_cmp_ge_u32 s5, 8
    s_cselect_b32 s60, s34, s24         ; wo
    s_cselect_b32 s61, s35, s25
    s_mov_b32 s62, 4718592
    s_mov_b32 s63, 0x20000
    s_lshl_b32 s11, s4, 8
    s_lshl_b32 s12, s9, 5
    s_add_u32 s11, s11, s12
    s_mul_i32 s11, s11, 1152
    v_mov_b32 v99, 0
    buffer_load_dword v104, v99, s[52:55], s8 offen sc1
    buffer_load_dword v105, v99, s[60:63], s11 offen {wld}
    """)
    a("""
    v_and_b32 v17, 1, v9
    v_lshlrev_b32 v17, 4, v17           ; 16*(e&1)
    s_mov_b32 s11, 0x01000100
    s_mov_b32 s12, 0x03020302
    v_mov_b32 v19, 0xffffff00
    v_lshlrev_b32 v96, 4, v2
    v_lshl_add_u32 v96, v1, 7, v96
    v_lshrrev_b32 v97, 1, v1
    s_lshl_b32 s10, s6, 10
    s_lshl_b32 s13, s3, 8
    s_add_u32 s10, s10, s13
    """)
    a(f"s_add_u32 s10, s10, {QP}")
    a(f"s_waitcnt vmcnt({9+NT})")
    for k in range(4): a(f"v_alignbit_b32 v{XR+k}, v{XR+k+1}, v{XR+k}, v17")
    a(f"v_lshrrev_b32 v{XR+4}, v17, v{XR+4}")
    for t in range(9):
        sel = "s12" if t & 1 else "s11"
        a(f"v_perm_b32 v18, v{XR + t//2}, v{XR + t//2}, {sel}")
        for r in range(4): a(f"v_and_b32 v{AB+4*t+r}, v18, v{4+r}")
    gettag()
    for t in range(9):
        r = WB + 4 * t
        a(f"s_waitcnt vmcnt({8-t+NT})")
        c = "0" if t == 0 else f"v[{DQ}:{DQ+3}]"
        a(f"v_mfma_f32_16x16x32_bf16 v[{DQ}:{DQ+3}], v[{AB+4*t}:{AB+4*t+3}], v[{r}:{r+3}], {c}")
    a(f"""
    v_permlane32_swap_b32 v{DQ}, v100
    v_permlane32_swap_b32 v{DQ+1}, v101
    v_permlane32_swap_b32 v{DQ+2}, v102
    v_permlane32_swap_b32 v{DQ+3}, v103
    v_add_f32_dpp v{DQ}, v100, v{DQ} row_ror:8 {DP}
    v_add_f32_dpp v{DQ+1}, v101, v{DQ+1} row_ror:8 {DP}
    v_add_f32_dpp v{DQ+2}, v102, v{DQ+2} row_ror:8 {DP}
    v_add_f32_dpp v{DQ+3}, v103, v{DQ+3} row_ror:8 {DP}
    v_and_or_b32 v{DQ}, v{DQ}, v19, s42
    v_and_or_b32 v{DQ+1}, v{DQ+1}, v19, s42
    v_and_or_b32 v{DQ+2}, v{DQ+2}, v19, s42
    v_and_or_b32 v{DQ+3}, v{DQ+3}, v19, s42
    s_mov_b64 exec, 0x00ff00ff
    buffer_store_dwordx4 v[{DQ}:{DQ+3}], v96, s[52:55], s10 offen sc1
    s_mov_b64 exec, -1
    """)
    stamp(2)
    a(f"""
    s_cmp_lt_u32 s5, 13
    s_cselect_b32 s10, 8, 0
    s_lshl_b32 s11, s4, 4
    s_add_u32 s10, s10, s11
    s_lshl_b32 s10, s10, 10
    s_add_u32 s10, s10, s13
    s_add_u32 s10, s10, {QP}
    s_add_u32 s11, s10, 4096
    v_lshlrev_b32 v96, 10, v1
    v_lshl_add_u32 v96, v2, 4, v96
    v_and_b32 v98, 1, v1
    v_lshl_add_u32 v97, v98, 1, v97
    v_lshl_add_u32 v97, v10, 3, v97
    v_lshrrev_b32 v98, 3, v2
    v_lshl_add_u32 v97, v98, 2, v97
    v_lshlrev_b32 v97, 1, v97
    s_lshl_b32 s12, s3, 7
    v_add_u32 v97, s12, v97
    s_mov_b32 s14, {spin}
    {'s_branch L_q_ok' if 'q' in diag else ''}
L_poll_q:
    buffer_load_dwordx4 v[20:23], v96, s[52:55], s10 offen sc1
    buffer_load_dwordx4 v[24:27], v96, s[52:55], s11 offen sc1
    s_waitcnt vmcnt(0)
    """)
    if 'p' in diag:
        for i in range(4):
            a(f"s_cmp_eq_u32 s14, {spin-i}\ns_cbranch_scc0 L_np{i}\ns_memrealtime s[{72+2*i}:{73+2*i}]\nL_np{i}:")
    tagcheck(list(range(20, 28)), 28)
    a(f"""
    s_cbranch_vccz L_q_ok
    s_sleep {qsleep}
    s_sub_u32 s14, s14, 1
    s_cmp_lg_u32 s14, 0
    s_cbranch_scc1 L_poll_q
L_q_ok:
    """)
    for k in range(4): a(f"v_add_f32 v{20+k}, v{20+k}, v{24+k}")
    a(f"""
    v_permlane32_swap_b32 v20, v21
    v_permlane32_swap_b32 v22, v23
    v_add_f32 v20, v20, v21
    v_add_f32 v22, v22, v23
    v_permlane16_swap_b32 v20, v22
    v_add_f32 v20, v20, v22
    v_cvt_pk_bf16_f32 v20, v20, v20
    ds_write_b16 v97, v20 offset:{L_Q}
    s_waitcnt lgkmcnt(0)
    """)
    stamp(3)
    a("s_barrier")
    a("s_cmp_eq_u32 s3, 0")
    a("s_cbranch_scc0 L_oproj")
    a("v_lshlrev_b32 v9, 6, v2")
    a("s_barrier")
    a("s_barrier")
    for i in range(4): a(f"ds_read_b128 v[{20+4*i}:{23+4*i}], v9 offset:{L_M+16*i}")
    for i in range(4): a(f"ds_read_b128 v[{36+4*i}:{39+4*i}], v9 offset:{L_L+16*i}")
    a("s_waitcnt lgkmcnt(4)")
    a("v_max3_f32 v20, v20, v21, v22")
    for i in range(23, 35, 2): a(f"v_max3_f32 v20, v20, v{i}, v{i+1}")
    a("v_max_f32 v20, v20, v35")
    a("s_waitcnt lgkmcnt(0)")
    a("v_add_f32 v21, v36, v37")
    for i in range(38, 52): a(f"v_add_f32 v21, v21, v{i}")
    a("""
    v_and_or_b32 v20, v20, v19, s42
    v_and_or_b32 v21, v21, v19, s42
    v_mov_b32 v22, v20
    v_mov_b32 v23, v21
    v_and_b32 v24, 3, v2
    v_lshlrev_b32 v24, 4, v24
    v_lshrrev_b32 v25, 3, v2
    v_lshl_add_u32 v24, v25, 6, v24
    s_mov_b64 exec, 0xf0f
    buffer_store_dwordx4 v[20:23], v24, s[52:55], s8 offen offset:1024 sc1
    s_mov_b64 exec, -1
    """)
    stamp(4)
    a("s_barrier")
    a("s_barrier")
    stamp(5)
    for i in range(4): a(f"ds_read_b128 v[{20+4*i}:{23+4*i}], v3 offset:{L_O+1024*i}")
    a("s_waitcnt lgkmcnt(2)")
    for k in range(4): a(f"v_add_f32 v{20+k}, v{20+k}, v{24+k}")
    a("s_waitcnt lgkmcnt(0)")
    for k in range(4): a(f"v_add_f32 v{28+k}, v{28+k}, v{32+k}")
    for k in range(4): a(f"v_add_f32 v{20+k}, v{20+k}, v{28+k}")
    for k in range(4): a(f"v_and_or_b32 v{20+k}, v{20+k}, v19, s42")
    a("buffer_store_dwordx4 v[20:23], v3, s[52:55], s8 offen sc1")
    stamp(6)
    if stamps:
        a("s_waitcnt vmcnt(0)")
        stamp(7)
    stamp_out()
    a("s_endpgm")
    WO = 20; G = 68; AO = 84; DO = 100
    a(f"""
L_oproj:
    s_cmp_ge_u32 s5, 8
    s_cselect_b32 s44, s34, s24         ; wo
    s_cselect_b32 s45, s35, s25
    s_cselect_b32 s12, 0, 13
    s_cselect_b32 s13, 13, 3
    s_lshl_b32 s10, s4, 8
    s_lshl_b32 s11, s9, 5
    s_add_u32 s10, s10, s11             ; R0 = 256h + 32 slice
    s_mul_i32 s10, s10, 1152
    s_sub_u32 s11, s3, 1
    s_mul_i32 s14, s11, 384
    s_add_u32 s10, s10, s14
    v_mul_u32_u24 v11, 4608, v9
    v_lshl_add_u32 v11, v10, 4, v11
    s_lshl_b32 s15, s4, 4
    s_add_u32 s15, s15, s12
    s_mul_i32 s15, s15, {SLOT}
    s_add_u32 s15, s15, {SB0}
    v_cmp_gt_u32 s[80:81], s13, v10
    v_add_u32 v13, 8, v10
    v_cmp_gt_u32 s[82:83], s13, v13
    v_cndmask_b32 v12, 0, v10, s[80:81]
    v_cndmask_b32 v13, 0, v13, s[82:83]
    v_mul_u32_u24 v14, {SLOT}, v12
    v_mul_u32_u24 v15, {SLOT}, v13
    v_lshl_add_u32 v12, v9, 4, v14      ; + 16 e
    v_lshl_add_u32 v13, v9, 4, v15
    s_lshr_b32 s56, s9, 2
    s_lshl_b32 s56, s56, 6
    s_add_u32 s56, s56, s15
    s_lshl_b32 s57, s9, 7
    s_add_u32 s57, s57, s15             ; o soffset
    v_lshlrev_b32 v16, 4, v2
    v_lshl_add_u32 v16, v1, 7, v16      ; 128 g + 16 n
    v_lshrrev_b32 v18, 1, v1
    s_mul_i32 s58, s11, 768
    s_add_u32 s58, s58, s8
    s_lshl_b32 s59, s11, 8
    s_add_u32 s59, s59, s2
    s_cmp_ge_u32 s59, 144
    s_cselect_b32 s11, 144, 0
    s_cselect_b32 s12, {8*SLOT}, 0
    s_sub_u32 s11, s59, s11
    s_lshl_b32 s11, s11, 4
    s_add_u32 s11, s11, s12
    s_add_u32 s11, s11, {YOFF+SB0}
    s_add_u32 s12, s11, {128*SLOT}
    v_lshl_add_u32 v116, v9, 4, v10
    v_mul_u32_u24 v116, {SLOT}, v116
    v_and_b32 v117, 1, v1
    v_lshl_add_u32 v117, v117, 1, v18
    v_lshlrev_b32 v117, 1, v117
    s_andn2_b32 s88, s59, 15
    s_lshl_b32 s88, s88, 3
    s_and_b32 s89, s59, 7
    s_lshl_b32 s89, s89, 4
    s_add_u32 s88, s88, s89
    s_and_b32 s89, s59, 8
    s_add_u32 s88, s88, s89
    s_mov_b32 s60, s36
    s_mov_b32 s61, s37
    s_movk_i32 s62, 2304
    s_mov_b32 s63, 0x20000
    s_barrier
    s_barrier
    s_mov_b32 s14, {spin}
    {'s_branch L_st_ok' if 's' in diag else ''}
L_poll_st:
    buffer_load_dwordx2 v[{G+8}:{G+9}], v14, s[52:55], s56 offen offset:1024 sc1
    buffer_load_dwordx2 v[{G+10}:{G+11}], v15, s[52:55], s56 offen offset:1024 sc1
    s_waitcnt vmcnt(0)
    """)
    tagcheck([G+8, G+9, G+10, G+11], 80)
    a(f"""
    s_cbranch_vccz L_st_ok
    s_sleep 8
    s_sub_u32 s14, s14, 1
    s_cmp_lg_u32 s14, 0
    s_cbranch_scc1 L_poll_st
L_st_ok:
    v_max_f32 v80, v{G+8}, v{G+10}
    v_max_f32_dpp v80, v80, v80 quad_perm:[1,0,3,2] {DP}
    v_max_f32_dpp v80, v80, v80 quad_perm:[2,3,0,1] {DP}
    v_max_f32_dpp v80, v80, v80 row_half_mirror {DP}
    v_sub_f32 v{G+8}, v{G+8}, v80
    v_sub_f32 v{G+10}, v{G+10}, v80
    v_exp_f32 v{G+8}, v{G+8}
    v_exp_f32 v{G+10}, v{G+10}
    v_cndmask_b32 v{G+8}, 0, v{G+8}, s[80:81]
    v_cndmask_b32 v{G+10}, 0, v{G+10}, s[82:83]
    v_mul_f32 v{G+9}, v{G+8}, v{G+9}
    v_fmac_f32 v{G+9}, v{G+10}, v{G+11}
    v_add_f32_dpp v{G+9}, v{G+9}, v{G+9} quad_perm:[1,0,3,2] {DP}
    v_add_f32_dpp v{G+9}, v{G+9}, v{G+9} quad_perm:[2,3,0,1] {DP}
    v_add_f32_dpp v{G+9}, v{G+9}, v{G+9} row_half_mirror {DP}
    v_rcp_f32 v{G+9}, v{G+9}
    v_mul_f32 v{G+8}, v{G+8}, v{G+9}
    v_mul_f32 v{G+10}, v{G+10}, v{G+9}
    """)
    stamp(4)
    a("s_barrier")
    for t in range(4):
        for cb in range(3):
            r = WO + 4 * (3 * t + cb)
            a(f"buffer_load_dwordx4 v[{r}:{r+3}], v11, s[44:47], s10 offen offset:{1152*t+128*cb} {wld}")
    a("s_barrier")
    a(f"s_mov_b32 s14, {spin}")
    a(f"s_waitcnt vmcnt({wolead})")
    a(f"""
L_poll_o:
    buffer_load_dwordx4 v[{G}:{G+3}], v12, s[52:55], s57 offen sc1
    buffer_load_dwordx4 v[{G+4}:{G+7}], v13, s[52:55], s57 offen sc1
    s_waitcnt vmcnt(0)
    """)
    if stamps:
        a(f"s_cmp_eq_u32 s14, {spin}\ns_cbranch_scc0 L_nost\ns_memrealtime s[66:67]\nL_nost:")
    tagcheck(list(range(G, G+8)), 80)
    a(f"""
    s_cbranch_vccz L_o_ok
    s_sub_u32 s14, s14, 1
    s_cmp_lg_u32 s14, 0
    s_cbranch_scc1 L_poll_o
L_o_ok:
    """)
    stamp(5)
    for k in range(4): a(f"v_mul_f32 v{G+k}, v{G+8}, v{G+k}")
    for k in range(4): a(f"v_fmac_f32 v{G+k}, v{G+10}, v{G+4+k}")
    for pat in ("quad_perm:[1,0,3,2]", "quad_perm:[2,3,0,1]", "row_half_mirror"):
        for r in (G, G+1, G+2, G+3):
            a(f"v_add_f32_dpp v{r}, v{r}, v{r} {pat} {DP}")
    for t in range(4):
        a(f"v_cvt_pk_bf16_f32 v{G+t}, v{G+t}, v{G+t}")
    for t in range(4):
        for r in range(4): a(f"v_and_b32 v{AO+4*t+r}, v{G+t}, v{4+r}")
        if t > 0:
            for cb in range(3):
                r = WO + 4 * (3 * (t-1) + cb); d = DO + 4 * cb
                c = "0" if t == 1 else f"v[{d}:{d+3}]"
                a(f"v_mfma_f32_16x16x32_bf16 v[{d}:{d+3}], v[{AO+4*(t-1)}:{AO+4*(t-1)+3}], v[{r}:{r+3}], {c}")
    for cb in range(3):
        r = WO + 4 * (9 + cb); d = DO + 4 * cb
        a(f"v_mfma_f32_16x16x32_bf16 v[{d}:{d+3}], v[{AO+12}:{AO+15}], v[{r}:{r+3}], v[{d}:{d+3}]")
    a("s_mov_b32 s56, 0x00ff00ff\ns_mov_b32 s57, 0x00ff00ff")
    for i in range(4): a(f"v_permlane32_swap_b32 v{DO+i}, v{DO+4+i}")
    for i in range(4): a(f"v_permlane32_swap_b32 v{DO+8+i}, v{DO+12+i}")
    for i in range(4): a(f"v_add_f32_dpp v{DO+i}, v{DO+4+i}, v{DO+i} row_ror:8 {DP}")
    for i in range(4): a(f"v_add_f32_dpp v{DO+8+i}, v{DO+12+i}, v{DO+8+i} row_ror:8 {DP}")
    for r in (DO, DO+1, DO+2, DO+3, DO+8, DO+9, DO+10, DO+11): a(f"v_and_or_b32 v{r}, v{r}, v19, s42")
    a(f"""
    s_mov_b64 exec, s[56:57]
    buffer_store_dwordx4 v[{DO}:{DO+3}], v16, s[52:55], s58 offen offset:{YOFF} sc1
    s_mov_b32 exec_hi, 0
    buffer_store_dwordx4 v[{DO+8}:{DO+11}], v16, s[52:55], s58 offen offset:{YOFF+512} sc1
    s_mov_b64 exec, -1
    """)
    stamp(6)
    a(f"""
    s_cmp_ge_u32 s59, 288
    s_cbranch_scc1 L_hdone
    s_mov_b32 s14, {spin}
L_poll_y:
    buffer_load_dwordx4 v[20:23], v116, s[52:55], s11 offen sc1
    buffer_load_dwordx4 v[24:27], v116, s[52:55], s12 offen sc1
    s_waitcnt vmcnt(0)
    """)
    tagcheck(list(range(20, 28)), 28)
    a(f"""
    s_cbranch_vccz L_y_ok
    s_sub_u32 s14, s14, 1
    s_cmp_lg_u32 s14, 0
    s_cbranch_scc1 L_poll_y
L_y_ok:
    """)
    for k in range(4): a(f"v_add_f32 v{20+k}, v{20+k}, v{24+k}")
    a(f"""
    v_permlane32_swap_b32 v20, v21
    v_permlane32_swap_b32 v22, v23
    v_add_f32 v20, v20, v21
    v_add_f32 v22, v22, v23
    v_permlane16_swap_b32 v20, v22
    v_add_f32 v20, v20, v22
    v_add_f32_dpp v20, v20, v20 row_ror:8 {DP}
    v_add_f32_dpp v20, v20, v20 row_ror:4 {DP}
    v_add_f32_dpp v20, v20, v20 row_ror:2 {DP}
    v_add_f32_dpp v20, v20, v20 row_ror:1 {DP}
    v_cvt_pk_bf16_f32 v20, v20, v20
    s_mov_b32 exec_lo, 0x00010001
    s_mov_b32 exec_hi, 0x00010001
    buffer_store_short v20, v117, s[60:63], s88 offen
    s_cmp_eq_u32 s59, 144
    s_cbranch_scc0 L_hdone
    s_mov_b64 exec, 1
    v_mov_b32 v21, s43
    v_mov_b32 v22, {EPOCH}
    buffer_store_dword v21, v22, s[52:55], 0 offen
L_hdone:
    """)
    stamp(7)
    stamp_out()
    a("s_endpgm")
    a("L_stream:")
    a("""
    s_add_u32 s48, s48, s14
    s_addc_u32 s49, s49, 0
    s_mov_b32 s50, s46
    v_bfe_u32 v11, v0, 3, 1
    v_lshlrev_b32 v11, 8, v11
    v_lshl_add_u32 v11, v1, 6, v11
    v_lshl_add_u32 v11, v10, 4, v11
    v_lshlrev_b32 v10, 4, v0
    """)
    common2()
    a("""
    v_lshrrev_b32 v8, 1, v1
    v_lshlrev_b32 v8, 9, v8
    v_lshl_add_u32 v8, v2, 5, v8
    v_and_b32 v227, 1, v1
    v_lshl_add_u32 v8, v227, 4, v8
    s_lshl_b32 s12, s9, 10
    v_add_u32 v8, s12, v8
    """)
    for u in range(39, NU):
        a(f"s_cmp_gt_u32 s15, {u}")
        a(f"s_cselect_b32 s{84+u-39}, 0, 0xff800000")
    if 't' in diag:
        a("v_mov_b32 v254, 0")
        a(f"buffer_load_dword v255, v254, s[48:51], 0 offen {ld}")
        issued.append(("t", 0))
    for u in range(D0, NU):
        a(f"s_waitcnt vmcnt({D-1})")
        issue("k", u)
    gettag()
    stamp(1)
    a("s_barrier")
    stamp(2)
    a(f"ds_read_b128 v[{QR}:{QR+3}], v11 offset:{L_Q}")
    a("s_waitcnt lgkmcnt(0)")
    groups = [list(range(i, min(i + 3, NU))) for i in range(0, NU, 3)]
    nv = 0
    def dpp_group(gi):
        us = groups[gi]
        for step in range(4):
            for k, u in enumerate(us):
                d = DT + 12 * (gi & 1) + 4 * k
                if step == 0:
                    a(f"v_mov_b32_dpp v{SB+u}, v{d} quad_perm:[0,0,0,0] {DP}")
                else:
                    q = step
                    a(f"v_add_f32_dpp v{SB+u}, v{d+step}, v{SB+u} quad_perm:[{q},{q},{q},{q}] {DP}")
    for gi, us in enumerate(groups):
        wait("k", us[-1])
        for k, u in enumerate(us):
            d = DT + 12 * (gi & 1) + 4 * k
            a(f"v_mfma_f32_16x16x32_bf16 v[{d}:{d+3}], {K(u)}, v[{QR}:{QR+3}], 0")
        done = us[-1] + 1
        want = min(done, D) + max(0, done - (NU - D // 2))
        while nv < want:
            issue("v", nv); nv += 1
        if gi > 0: dpp_group(gi - 1)
    dpp_group(len(groups) - 1)
    for u in range(39, NU): a(f"v_add_f32 v{SB+u}, s{84+u-39}, v{SB+u}")
    M = DT
    a(f"v_max3_f32 v{M}, v{SB}, v{SB+1}, v{SB+2}")
    for u in range(3, NU, 2): a(f"v_max3_f32 v{M}, v{M}, v{SB+u}, v{SB+u+1}")
    c = (128 ** -0.5) * math.log2(math.e)
    a(f"s_mov_b32 s13, {f32bits(c):#x}")
    a(f"v_mul_f32 v{M}, s13, v{M}")
    a(f"""
    s_lshl_b32 s12, s9, 4
    v_lshlrev_b32 v11, 6, v2
    v_lshl_add_u32 v{M+1}, v1, 2, v11
    v_add_u32 v{M+1}, s12, v{M+1}
    ds_write_b32 v{M+1}, v{M} offset:{L_M}
    s_waitcnt lgkmcnt(0)
    """)
    stamp(3)
    a("s_barrier")
    for i in range(4): a(f"ds_read_b128 v[{M+4+4*i}:{M+7+4*i}], v11 offset:{L_M+16*i}")
    a(f"v_mov_b32 v227, 0xffffff00")
    a("s_waitcnt lgkmcnt(0)")
    a(f"v_max3_f32 v{M}, v{M+4}, v{M+5}, v{M+6}")
    for i in range(M+7, M+19, 2): a(f"v_max3_f32 v{M}, v{M}, v{i}, v{i+1}")
    a(f"v_max_f32 v{M}, v{M}, v{M+19}")
    a(f"v_and_or_b32 v{M}, v{M}, v227, s42")
    Lr = M + 2
    for u0 in range(0, NU, 4):
        us = list(range(u0, min(u0 + 4, NU)))
        for u in us: a(f"v_fma_f32 v{SB+u}, v{SB+u}, s13, -v{M}")
        for u in us: a(f"v_exp_f32 v{SB+u}, v{SB+u}")
        for u in us:
            if u == 0: a(f"v_mov_b32 v{Lr}, v{SB}")
            else: a(f"v_add_f32 v{Lr}, v{Lr}, v{SB+u}")
        for u in us: a(f"v_cvt_pk_bf16_f32 v{SB+u}, v{SB+u}, v{SB+u}")
    a(f"ds_write_b32 v{M+1}, v{Lr} offset:{L_L}")
    a("s_waitcnt lgkmcnt(0)")
    a("s_barrier")
    stamp(4)
    ACC = M + 4; P0 = M + 8
    b3done = False
    for u in range(NU):
        p = P0 + 4 * (u & 1)
        for r in range(4): a(f"v_and_b32 v{p+r}, v{SB+u}, v{4+r}")
        wait("v", u)
        while nv < min(NU, u + 1 + D):
            issue("v", nv); nv += 1
        cc = "0" if u == 0 else f"v[{ACC}:{ACC+3}]"
        a(f"v_mfma_f32_16x16x32_bf16 v[{ACC}:{ACC+3}], v[{p}:{p+3}], {K(u)}, {cc}")
        if nv == NU and not b3done:
            stamp(5)
            a("s_barrier")
            b3done = True
    assert b3done
    a(f"ds_write_b128 v8, v[{ACC}:{ACC+3}] offset:{L_O}")
    a("s_waitcnt lgkmcnt(0)")
    stamp(6)
    a("s_barrier")
    stamp_out()
    a("L_end:")
    a("s_endpgm")
    a.raw('.section .rodata,"a"'); a.raw(".p2align 6"); a.raw(f".amdhsa_kernel {NAME}_kernel")
    a.raw("  .amdhsa_next_free_vgpr 256"); a.raw("  .amdhsa_next_free_sgpr 96"); a.raw("  .amdhsa_accum_offset 256")
    a.raw("  .amdhsa_group_segment_fixed_size 0"); a.raw("  .amdhsa_kernarg_size 104"); a.raw("  .amdhsa_user_sgpr_count 2")
    a.raw("  .amdhsa_user_sgpr_kernarg_segment_ptr 1"); a.raw("  .amdhsa_system_sgpr_workgroup_id_x 1"); a.raw(".end_amdhsa_kernel")
    return a.text()

if __name__ == "__main__":
    import argparse
    ap = argparse.ArgumentParser()
    ap.add_argument("-o", default="cdna_kernels/" + NAME + ".s")
    ap.add_argument("--ld", default="nt"); ap.add_argument("--stamps", action="store_true")
    ap.add_argument("--D", type=int, default=8); ap.add_argument("--diag", default=""); ap.add_argument("--qsleep", type=int, default=4)
    args = ap.parse_args()
    open(args.o, "w").write(gen(ld=args.ld, stamps=args.stamps, D=args.D, diag=args.diag, qsleep=args.qsleep))
```

```python
import sys, math, struct
sys.path.insert(0, "gen")
from asmlib import Asm

NAME = "concat_heads__sliding_block_cached__gqa_block_cached__decode"
HDR = open("cdna_kernels/" + NAME + ".s.ref").read().split("; Override launch")[0]

def f32bits(x): return struct.unpack("<I", struct.pack("<f", x))[0]

SLOT = 4352
YOFF = 1280
QP = 4096
EPOCH = 0
SB0 = 4096 + 262144
WS_REC = 16 << 20
DELTA = 2 << 20
STAMP = 8 << 20
NU = 43
L_Q, L_M, L_L, L_O = 0, 512, 1536, 2560
LDS_BYTES = 6656
DP = "row_mask:0xf bank_mask:0xf"

def gen(ld="nt", stamps=False, D=8, spin=200000, wld=None, wolead=2, qsleep=4, diag='', D0=12, NFQ=8, NFS=16, NFO=40):
    wld = ld if wld is None else wld
    a = Asm()
    a.raw(HDR.rstrip("\n"))
    a.raw(f"; @launch grid=(256,1,1) block=(512,1,1) lds={LDS_BYTES}")
    a.raw('.amdgcn_target "amdgcn-amd-amdhsa--gfx950"')
    a.raw(".text"); a.raw(f".globl {NAME}_kernel"); a.raw(".p2align 8"); a.raw(f".type {NAME}_kernel,@function")
    a.label(f"{NAME}_kernel")
    def stamp(i):
        if 'p' in diag and i >= 4: return
        if stamps: a(f"s_memrealtime s[{64+2*i}:{65+2*i}]")
    def stamp_out():
        if not stamps: return
        a("s_waitcnt lgkmcnt(0)")
        a("s_mov_b64 exec, 1")
        a("s_lshl_b32 s7, s2, 3"); a("s_add_u32 s7, s7, s3"); a("s_lshl_b32 s7, s7, 5")
        a(f"s_add_u32 s7, s7, {STAMP}")
        a("v_mov_b32 v20, 0")
        for i in range(8): a(f"v_mov_b32 v{24+i}, s{64+2*i}")
        a("buffer_store_dwordx4 v[24:27], v20, s[52:55], s7 offen")
        a("buffer_store_dwordx4 v[28:31], v20, s[52:55], s7 offen offset:16")
    def tagcheck(regs, acc, dst='vcc'):
        a(f"v_xor_b32 v{acc}, s42, v{regs[0]}")
        for r in regs[1:]:
            a(f"v_bitop3_b32 v{acc}, v{r}, s42, v{acc} bitop3:0xbe")
        a(f"v_and_b32 v{acc}, 0xff, v{acc}")
        a(f"v_cmp_ne_u32 {dst}, 0, v{acc}")
    def masks():
        a("""
    v_and_b32 v8, 1, v0
    v_lshlrev_b32 v8, 4, v8
    v_mov_b32 v7, 0xffff
    v_lshlrev_b32 v8, v8, v7            ; 0xffff << 16*(n&1)
    v_bfe_u32 v7, v0, 1, 2              ; (n&7)>>1
    v_cmp_eq_u32 vcc, 0, v7
    v_cndmask_b32 v4, 0, v8, vcc
    v_cmp_eq_u32 vcc, 1, v7
    v_cndmask_b32 v5, 0, v8, vcc
    v_cmp_eq_u32 vcc, 2, v7
    v_cndmask_b32 v6, 0, v8, vcc
    v_cmp_eq_u32 vcc, 3, v7
    v_cndmask_b32 v7, 0, v8, vcc
    """)
    def common2():
        a(f"""
    s_load_dword s42, s[40:41], {EPOCH}
    s_mov_b32 s52, s40
    s_mov_b32 s53, s41
    s_mov_b32 s54, {WS_REC}
    s_mov_b32 s55, 0x20000
    s_lshl_b32 s6, s4, 4
    s_add_u32 s6, s6, s5                ; wslot = h*16 + j
    s_mul_i32 s8, s6, {SLOT}
    s_add_u32 s8, s8, {SB0}
    v_lshlrev_b32 v3, 4, v0             ; lane*16
    """)
        masks()
    def gettag():
        a("""
    s_waitcnt lgkmcnt(0)
    s_add_u32 s43, s42, 1
    s_and_b32 s42, s43, 0xff
    """)
    if stamps:
        for i in range(1, 8): a(f"s_mov_b32 s{64+2*i}, 0")
    stamp(0)
    KB = 12
    SB = KB + 4 * NU
    QR = 228
    DT = 232
    vK, vV = 9, 10
    def K(u): return f"v[{KB+4*u}:{KB+4*u+3}]"
    a("""
    s_load_dwordx16 s[16:31], s[0:1], 0
    s_load_dwordx8 s[32:39], s[0:1], 64
    s_load_dwordx2 s[40:41], s[0:1], 96
    s_cmp_ge_u32 s2, 256
    s_cbranch_scc1 L_end
    v_lshrrev_b32 v1, 6, v0
    v_and_b32 v0, 63, v0
    v_readfirstlane_b32 s3, v1
    s_and_b32 s4, s2, 7
    s_lshl_b32 s4, s4, 1
    s_lshr_b32 s5, s2, 7
    s_add_u32 s4, s4, s5
    s_bfe_u32 s5, s2, 0x40003           ; j = (wg>>3)&15
    v_lshrrev_b32 v1, 4, v0             ; g
    v_and_b32 v2, 15, v0                ; n
    s_mov_b32 s47, 0x20000
    s_mov_b32 s51, 0x20000
    s_cmp_lt_u32 s3, 4
    s_cbranch_scc1 L_help
    s_sub_u32 s9, s3, 4                 ; sw
    s_cmp_lt_u32 s5, 13
    s_cselect_b32 s10, 0, 13
    s_movk_i32 s11, 128
    s_cselect_b32 s11, 512, s11
    s_mov_b32 s12, 1431655766
    s_cselect_b32 s12, 330382100, s12
    s_cselect_b32 s13, 0, 0x180000
    s_sub_u32 s10, s5, s10
    s_lshl_b32 s10, s10, 2
    s_add_u32 s10, s10, s9
    s_mul_i32 s14, s10, s11
    s_add_u32 s15, s14, s11
    s_mul_hi_u32 s14, s14, s12
    s_mul_hi_u32 s15, s15, s12
    s_sub_u32 s15, s15, s14
    s_lshl_b32 s14, s14, 10
    s_add_u32 s14, s14, s13
    s_lshl_b32 s13, s4, 21
    s_add_u32 s14, s14, s13
    s_lshl_b32 s46, s15, 10
    v_bfe_u32 v9, v0, 2, 2
    v_lshlrev_b32 v9, 8, v9
    v_lshl_add_u32 v9, v1, 6, v9
    v_and_b32 v10, 3, v0
    v_lshl_add_u32 v9, v10, 4, v9
    s_cmp_lt_u32 s5, 13
    s_waitcnt lgkmcnt(0)
    s_cselect_b32 s44, s28, s18         ; K
    s_cselect_b32 s45, s29, s19
    s_cselect_b32 s48, s30, s20         ; V
    s_cselect_b32 s49, s31, s21
    s_add_u32 s44, s44, s14
    s_addc_u32 s45, s45, 0
    """)
    issued = []
    def issue(kind, u):
        vo = vK if kind == "k" else vV
        srd = "s[44:47]" if kind == "k" else "s[48:51]"
        a(f"buffer_load_dwordx4 {K(u)}, v{vo}, {srd}, 0 offen offset:{(u&3)*1024} {ld}")
        if (u & 3) == 3: a(f"v_add_u32 v{vo}, 0x1000, v{vo}")
        issued.append((kind, u))
    def wait(kind, u):
        n = len(issued) - 1 - issued.index((kind, u))
        assert n <= 63
        a(f"s_waitcnt vmcnt({n})")
    for u in range(D0): issue("k", u)
    a("s_branch L_stream")
    XR = 12; WB = 20; AB = 56; DQ = 92
    a("""
L_help:
    s_and_b32 s9, s5, 7                 ; slice
    s_mul_i32 s10, s9, 72
    v_lshrrev_b32 v9, 3, v0             ; e
    v_and_b32 v10, 7, v0                ; n&7
    v_mul_u32_u24 v11, 9, v9
    v_add_u32 v11, s10, v11
    v_and_b32 v18, -2, v11
    v_lshlrev_b32 v18, 1, v18
    v_lshlrev_b32 v11, 13, v11
    v_lshl_add_u32 v11, v10, 4, v11
    s_lshl_b32 s10, s4, 9
    s_lshl_b32 s11, s3, 7
    s_add_u32 s10, s10, s11             ; 512*h + 128*hw
    s_mov_b32 s50, 1152
    s_mov_b32 s46, 4718592
    s_cmp_ge_u32 s5, 8
    s_waitcnt lgkmcnt(0)
    s_cselect_b32 s44, s32, s22         ; wq
    s_cselect_b32 s45, s33, s23
    s_cselect_b32 s48, s26, s16         ; x
    s_cselect_b32 s49, s27, s17
    buffer_load_dwordx4 v[12:15], v18, s[48:51], 0 offen
    buffer_load_dword v16, v18, s[48:51], 0 offen offset:16
    """)
    for t in range(9):
        r = WB + 4 * t
        a(f"buffer_load_dwordx4 v[{r}:{r+3}], v11, s[44:47], s10 offen {wld}")
        if t < 8 and 'w' not in diag: a("s_add_u32 s10, s10, 0x2000")
    stamp(1)
    common2()
    NT = 0
    if 'c' in diag:
        NT = 1
        a(f"""
    s_getpc_b64 s[60:61]
L_pc:
    s_and_b32 s11, s5, 3
    s_lshl_b32 s11, s11, 2
    s_add_u32 s11, s11, s3
    s_min_u32 s11, s11, (L_last-L_pc)/1024-1
    s_lshl_b32 s11, s11, 10
    s_add_u32 s60, s60, s11
    s_addc_u32 s61, s61, 0
    v_mov_b32 v105, s61
    v_add_co_u32 v104, vcc, s60, v3
    v_addc_co_u32 v105, vcc, 0, v105, vcc
    global_load_dwordx4 v[108:111], v[104:105], off
    """)
    if 't' in diag:
        NT = 2
        a(f"""
    s_cmp_ge_u32 s5, 8
    s_cselect_b32 s60, s34, s24         ; wo
    s_cselect_b32 s61, s35, s25
    s_mov_b32 s62, 4718592
    s_mov_b32 s63, 0x20000
    s_lshl_b32 s11, s4, 8
    s_lshl_b32 s12, s9, 5
    s_add_u32 s11, s11, s12
    s_mul_i32 s11, s11, 1152
    v_mov_b32 v99, 0
    buffer_load_dword v104, v99, s[52:55], s8 offen sc1
    buffer_load_dword v105, v99, s[60:63], s11 offen {wld}
    """)
    a("""
    v_and_b32 v17, 1, v9
    v_lshlrev_b32 v17, 4, v17           ; 16*(e&1)
    s_mov_b32 s11, 0x01000100
    s_mov_b32 s12, 0x03020302
    v_mov_b32 v19, 0xffffff00
    v_lshlrev_b32 v96, 4, v2
    v_lshl_add_u32 v96, v1, 7, v96
    v_lshrrev_b32 v97, 1, v1
    s_lshl_b32 s10, s6, 10
    s_lshl_b32 s13, s3, 8
    s_add_u32 s10, s10, s13
    """)
    a(f"s_add_u32 s10, s10, {QP}")
    a(f"s_waitcnt vmcnt({9+NT})")
    for k in range(4): a(f"v_alignbit_b32 v{XR+k}, v{XR+k+1}, v{XR+k}, v17")
    a(f"v_lshrrev_b32 v{XR+4}, v17, v{XR+4}")
    for t in range(9):
        sel = "s12" if t & 1 else "s11"
        a(f"v_perm_b32 v18, v{XR + t//2}, v{XR + t//2}, {sel}")
        for r in range(4): a(f"v_and_b32 v{AB+4*t+r}, v18, v{4+r}")
    gettag()
    for t in range(9):
        r = WB + 4 * t
        a(f"s_waitcnt vmcnt({8-t+NT})")
        c = "0" if t == 0 else f"v[{DQ}:{DQ+3}]"
        a(f"v_mfma_f32_16x16x32_bf16 v[{DQ}:{DQ+3}], v[{AB+4*t}:{AB+4*t+3}], v[{r}:{r+3}], {c}")
    a(f"""
    v_permlane32_swap_b32 v{DQ}, v100
    v_permlane32_swap_b32 v{DQ+1}, v101
    v_permlane32_swap_b32 v{DQ+2}, v102
    v_permlane32_swap_b32 v{DQ+3}, v103
    v_add_f32_dpp v{DQ}, v100, v{DQ} row_ror:8 {DP}
    v_add_f32_dpp v{DQ+1}, v101, v{DQ+1} row_ror:8 {DP}
    v_add_f32_dpp v{DQ+2}, v102, v{DQ+2} row_ror:8 {DP}
    v_add_f32_dpp v{DQ+3}, v103, v{DQ+3} row_ror:8 {DP}
    v_and_or_b32 v{DQ}, v{DQ}, v19, s42
    v_and_or_b32 v{DQ+1}, v{DQ+1}, v19, s42
    v_and_or_b32 v{DQ+2}, v{DQ+2}, v19, s42
    v_and_or_b32 v{DQ+3}, v{DQ+3}, v19, s42
    s_mov_b64 exec, 0x00ff00ff
    buffer_store_dwordx4 v[{DQ}:{DQ+3}], v96, s[52:55], s10 offen
    s_mov_b64 exec, -1
    s_add_u32 s15, s10, {DELTA}
    v_mov_b32 v100, v96
    """)
    stamp(2)
    a(f"""
    s_cmp_lt_u32 s5, 13
    s_cselect_b32 s10, 8, 0
    s_lshl_b32 s11, s4, 4
    s_add_u32 s10, s10, s11
    s_lshl_b32 s10, s10, 10
    s_add_u32 s10, s10, s13
    s_add_u32 s10, s10, {QP}
    s_add_u32 s11, s10, 4096
    v_lshlrev_b32 v96, 10, v1
    v_lshl_add_u32 v96, v2, 4, v96
    v_and_b32 v98, 1, v1
    v_lshl_add_u32 v97, v98, 1, v97
    v_lshl_add_u32 v97, v10, 3, v97
    v_lshrrev_b32 v98, 3, v2
    v_lshl_add_u32 v97, v98, 2, v97
    v_lshlrev_b32 v97, 1, v97
    s_lshl_b32 s12, s3, 7
    v_add_u32 v97, s12, v97
    s_mov_b32 s14, {spin+NFQ}
    {'s_branch L_q_ok' if 'q' in diag else ''}
L_poll_q:
    buffer_load_dwordx4 v[20:23], v96, s[52:55], s10 offen sc1
    buffer_load_dwordx4 v[24:27], v96, s[52:55], s11 offen sc1
    s_waitcnt vmcnt(0)
    """)
    if 'p' in diag:
        for i in range(4):
            a(f"s_cmp_eq_u32 s14, {spin-i}\ns_cbranch_scc0 L_np{i}\ns_memrealtime s[{72+2*i}:{73+2*i}]\nL_np{i}:")
    tagcheck(list(range(20, 28)), 28)
    a(f"""
    s_cbranch_vccz L_q_ok
    s_sleep {qsleep}
    s_sub_u32 s14, s14, 1
    s_cmp_lg_u32 s14, {spin}
    s_cbranch_scc1 L_q_more
    s_mov_b64 exec, 0x00ff00ff
    buffer_store_dwordx4 v[{DQ}:{DQ+3}], v100, s[52:55], s15 offen sc1
    s_mov_b64 exec, -1
    s_add_u32 s10, s10, {DELTA}
    s_add_u32 s11, s11, {DELTA}
L_q_more:
    s_cmp_lg_u32 s14, 0
    s_cbranch_scc1 L_poll_q
L_q_ok:
    """)
    for k in range(4): a(f"v_add_f32 v{20+k}, v{20+k}, v{24+k}")
    a(f"""
    v_permlane32_swap_b32 v20, v21
    v_permlane32_swap_b32 v22, v23
    v_add_f32 v20, v20, v21
    v_add_f32 v22, v22, v23
    v_permlane16_swap_b32 v20, v22
    v_add_f32 v20, v20, v22
    v_cvt_pk_bf16_f32 v20, v20, v20
    ds_write_b16 v97, v20 offset:{L_Q}
    s_mov_b64 exec, 0x00ff00ff
    buffer_store_dwordx4 v[{DQ}:{DQ+3}], v100, s[52:55], s15 offen sc1
    s_mov_b64 exec, -1
    s_waitcnt lgkmcnt(0)
    """)
    stamp(3)
    a("s_barrier")
    a("s_cmp_eq_u32 s3, 0")
    a("s_cbranch_scc0 L_oproj")
    a("v_lshlrev_b32 v9, 6, v2")
    a(f"s_add_u32 s9, s8, {DELTA}")
    a("s_barrier")
    a("s_barrier")
    for i in range(4): a(f"ds_read_b128 v[{20+4*i}:{23+4*i}], v9 offset:{L_M+16*i}")
    for i in range(4): a(f"ds_read_b128 v[{36+4*i}:{39+4*i}], v9 offset:{L_L+16*i}")
    a("s_waitcnt lgkmcnt(4)")
    a("v_max3_f32 v20, v20, v21, v22")
    for i in range(23, 35, 2): a(f"v_max3_f32 v20, v20, v{i}, v{i+1}")
    a("v_max_f32 v20, v20, v35")
    a("s_waitcnt lgkmcnt(0)")
    a("v_add_f32 v21, v36, v37")
    for i in range(38, 52): a(f"v_add_f32 v21, v21, v{i}")
    a("""
    v_and_or_b32 v20, v20, v19, s42
    v_and_or_b32 v21, v21, v19, s42
    v_mov_b32 v22, v20
    v_mov_b32 v23, v21
    v_and_b32 v24, 3, v2
    v_lshlrev_b32 v24, 4, v24
    v_lshrrev_b32 v25, 3, v2
    v_lshl_add_u32 v24, v25, 6, v24
    s_mov_b64 exec, 0xf0f
    buffer_store_dwordx4 v[20:23], v24, s[52:55], s8 offen offset:1024
    buffer_store_dwordx4 v[20:23], v24, s[52:55], s9 offen offset:1024 sc1
    s_mov_b64 exec, -1
    """)
    stamp(4)
    a("s_barrier")
    a("s_barrier")
    stamp(5)
    for i in range(4): a(f"ds_read_b128 v[{20+4*i}:{23+4*i}], v3 offset:{L_O+1024*i}")
    a("s_waitcnt lgkmcnt(2)")
    for k in range(4): a(f"v_add_f32 v{20+k}, v{20+k}, v{24+k}")
    a("s_waitcnt lgkmcnt(0)")
    for k in range(4): a(f"v_add_f32 v{28+k}, v{28+k}, v{32+k}")
    for k in range(4): a(f"v_add_f32 v{20+k}, v{20+k}, v{28+k}")
    for k in range(4): a(f"v_and_or_b32 v{20+k}, v{20+k}, v19, s42")
    a("buffer_store_dwordx4 v[20:23], v3, s[52:55], s8 offen")
    a("buffer_store_dwordx4 v[20:23], v3, s[52:55], s9 offen sc1")
    stamp(6)
    if stamps:
        a("s_waitcnt vmcnt(0)")
        stamp(7)
    stamp_out()
    a("s_endpgm")
    WO = 20; G = 68; AO = 84; DO = 100
    a(f"""
L_oproj:
    s_cmp_ge_u32 s5, 8
    s_cselect_b32 s44, s34, s24         ; wo
    s_cselect_b32 s45, s35, s25
    s_cselect_b32 s12, 0, 13
    s_cselect_b32 s13, 13, 3
    s_lshl_b32 s10, s4, 8
    s_lshl_b32 s11, s9, 5
    s_add_u32 s10, s10, s11             ; R0 = 256h + 32 slice
    s_mul_i32 s10, s10, 1152
    s_sub_u32 s11, s3, 1
    s_mul_i32 s14, s11, 384
    s_add_u32 s10, s10, s14
    v_mul_u32_u24 v11, 4608, v9
    v_lshl_add_u32 v11, v10, 4, v11
    s_lshl_b32 s15, s4, 4
    s_add_u32 s15, s15, s12
    s_mul_i32 s15, s15, {SLOT}
    s_add_u32 s15, s15, {SB0}
    v_cmp_gt_u32 s[80:81], s13, v10
    v_add_u32 v13, 8, v10
    v_cmp_gt_u32 s[82:83], s13, v13
    v_cndmask_b32 v12, 0, v10, s[80:81]
    v_cndmask_b32 v13, 0, v13, s[82:83]
    v_mul_u32_u24 v14, {SLOT}, v12
    v_mul_u32_u24 v15, {SLOT}, v13
    v_lshl_add_u32 v12, v9, 4, v14      ; + 16 e
    v_lshl_add_u32 v13, v9, 4, v15
    s_lshr_b32 s56, s9, 2
    s_lshl_b32 s56, s56, 6
    s_add_u32 s56, s56, s15
    s_lshl_b32 s57, s9, 7
    s_add_u32 s57, s57, s15             ; o soffset
    v_lshlrev_b32 v16, 4, v2
    v_lshl_add_u32 v16, v1, 7, v16      ; 128 g + 16 n
    v_lshrrev_b32 v18, 1, v1
    s_mul_i32 s58, s11, 768
    s_add_u32 s58, s58, s8
    s_lshl_b32 s59, s11, 8
    s_add_u32 s59, s59, s2
    s_cmp_ge_u32 s59, 144
    s_cselect_b32 s11, 144, 0
    s_cselect_b32 s12, {8*SLOT}, 0
    s_sub_u32 s11, s59, s11
    s_lshl_b32 s11, s11, 4
    s_add_u32 s11, s11, s12
    s_add_u32 s11, s11, {YOFF+SB0}
    s_add_u32 s12, s11, {128*SLOT}
    v_lshl_add_u32 v116, v9, 4, v10
    v_mul_u32_u24 v116, {SLOT}, v116
    v_and_b32 v117, 1, v1
    v_lshl_add_u32 v117, v117, 1, v18
    v_lshlrev_b32 v117, 1, v117
    s_andn2_b32 s88, s59, 15
    s_lshl_b32 s88, s88, 3
    s_and_b32 s89, s59, 7
    s_lshl_b32 s89, s89, 4
    s_add_u32 s88, s88, s89
    s_and_b32 s89, s59, 8
    s_add_u32 s88, s88, s89
    s_mov_b32 s60, s36
    s_mov_b32 s61, s37
    s_movk_i32 s62, 2304
    s_mov_b32 s63, 0x20000
    s_barrier
    s_barrier
    s_mov_b32 s14, {spin+NFS}
    buffer_load_dwordx4 v[{G}:{G+3}], v12, s[52:55], s57 offen sc1
    buffer_load_dwordx4 v[{G+4}:{G+7}], v13, s[52:55], s57 offen sc1
    {'s_branch L_st_ok' if 's' in diag else ''}
L_poll_st:
    buffer_load_dwordx2 v[{G+8}:{G+9}], v14, s[52:55], s56 offen offset:1024 sc1
    buffer_load_dwordx2 v[{G+10}:{G+11}], v15, s[52:55], s56 offen offset:1024 sc1
    s_waitcnt vmcnt(0)
    """)
    tagcheck([G+8, G+9, G+10, G+11], 80)
    a(f"""
    s_cbranch_vccz L_st_ok
    s_sleep 8
    s_sub_u32 s14, s14, 1
    s_cmp_eq_u32 s14, {spin}
    s_cselect_b32 s13, {DELTA}, 0
    s_add_u32 s56, s56, s13
    s_cmp_lg_u32 s14, 0
    s_cbranch_scc1 L_poll_st
L_st_ok:
    v_max_f32 v80, v{G+8}, v{G+10}
    v_max_f32_dpp v80, v80, v80 quad_perm:[1,0,3,2] {DP}
    v_max_f32_dpp v80, v80, v80 quad_perm:[2,3,0,1] {DP}
    v_max_f32_dpp v80, v80, v80 row_half_mirror {DP}
    v_sub_f32 v{G+8}, v{G+8}, v80
    v_sub_f32 v{G+10}, v{G+10}, v80
    v_exp_f32 v{G+8}, v{G+8}
    v_exp_f32 v{G+10}, v{G+10}
    v_cndmask_b32 v{G+8}, 0, v{G+8}, s[80:81]
    v_cndmask_b32 v{G+10}, 0, v{G+10}, s[82:83]
    v_mul_f32 v{G+9}, v{G+8}, v{G+9}
    v_fmac_f32 v{G+9}, v{G+10}, v{G+11}
    v_add_f32_dpp v{G+9}, v{G+9}, v{G+9} quad_perm:[1,0,3,2] {DP}
    v_add_f32_dpp v{G+9}, v{G+9}, v{G+9} quad_perm:[2,3,0,1] {DP}
    v_add_f32_dpp v{G+9}, v{G+9}, v{G+9} row_half_mirror {DP}
    v_rcp_f32 v{G+9}, v{G+9}
    v_mul_f32 v{G+8}, v{G+8}, v{G+9}
    v_mul_f32 v{G+10}, v{G+10}, v{G+9}
    """)
    stamp(4)
    a("s_barrier")
    for t in range(4):
        for cb in range(3):
            r = WO + 4 * (3 * t + cb)
            a(f"buffer_load_dwordx4 v[{r}:{r+3}], v11, s[44:47], s10 offen offset:{1152*t+128*cb} {wld}")
    a("s_barrier")
    a(f"s_mov_b32 s14, {spin+NFO}")
    a(f"s_waitcnt vmcnt({wolead})")
    a(f"""
L_poll_o:
    buffer_load_dwordx4 v[{G}:{G+3}], v12, s[52:55], s57 offen sc1
    buffer_load_dwordx4 v[{G+4}:{G+7}], v13, s[52:55], s57 offen sc1
    s_waitcnt vmcnt(0)
    """)
    if stamps:
        a(f"s_cmp_eq_u32 s14, {spin+NFO}\ns_cbranch_scc0 L_nost\ns_memrealtime s[66:67]\nL_nost:")
    tagcheck(list(range(G, G+8)), 80)
    a(f"""
    s_cbranch_vccz L_o_ok
    s_sub_u32 s14, s14, 1
    s_cmp_eq_u32 s14, {spin}
    s_cselect_b32 s13, {DELTA}, 0
    s_add_u32 s57, s57, s13
    s_cmp_lg_u32 s14, 0
    s_cbranch_scc1 L_poll_o
L_o_ok:
    """)
    stamp(5)
    for k in range(4): a(f"v_mul_f32 v{G+k}, v{G+8}, v{G+k}")
    for k in range(4): a(f"v_fmac_f32 v{G+k}, v{G+10}, v{G+4+k}")
    for pat in ("quad_perm:[1,0,3,2]", "quad_perm:[2,3,0,1]", "row_half_mirror"):
        for r in (G, G+1, G+2, G+3):
            a(f"v_add_f32_dpp v{r}, v{r}, v{r} {pat} {DP}")
    for t in range(4):
        a(f"v_cvt_pk_bf16_f32 v{G+t}, v{G+t}, v{G+t}")
    for t in range(4):
        for r in range(4): a(f"v_and_b32 v{AO+4*t+r}, v{G+t}, v{4+r}")
        if t > 0:
            for cb in range(3):
                r = WO + 4 * (3 * (t-1) + cb); d = DO + 4 * cb
                c = "0" if t == 1 else f"v[{d}:{d+3}]"
                a(f"v_mfma_f32_16x16x32_bf16 v[{d}:{d+3}], v[{AO+4*(t-1)}:{AO+4*(t-1)+3}], v[{r}:{r+3}], {c}")
    for cb in range(3):
        r = WO + 4 * (9 + cb); d = DO + 4 * cb
        a(f"v_mfma_f32_16x16x32_bf16 v[{d}:{d+3}], v[{AO+12}:{AO+15}], v[{r}:{r+3}], v[{d}:{d+3}]")
    a("s_mov_b32 s56, 0x00ff00ff\ns_mov_b32 s57, 0x00ff00ff")
    for i in range(4): a(f"v_permlane32_swap_b32 v{DO+i}, v{DO+4+i}")
    for i in range(4): a(f"v_permlane32_swap_b32 v{DO+8+i}, v{DO+12+i}")
    for i in range(4): a(f"v_add_f32_dpp v{DO+i}, v{DO+4+i}, v{DO+i} row_ror:8 {DP}")
    for i in range(4): a(f"v_add_f32_dpp v{DO+8+i}, v{DO+12+i}, v{DO+8+i} row_ror:8 {DP}")
    for r in (DO, DO+1, DO+2, DO+3, DO+8, DO+9, DO+10, DO+11): a(f"v_and_or_b32 v{r}, v{r}, v19, s42")
    a(f"""
    s_mov_b64 exec, s[56:57]
    buffer_store_dwordx4 v[{DO}:{DO+3}], v16, s[52:55], s58 offen offset:{YOFF} sc1
    s_mov_b32 exec_hi, 0
    buffer_store_dwordx4 v[{DO+8}:{DO+11}], v16, s[52:55], s58 offen offset:{YOFF+512} sc1
    s_mov_b64 exec, -1
    """)
    stamp(6)
    a(f"""
    s_cmp_ge_u32 s59, 288
    s_cbranch_scc1 L_hdone
    s_mov_b32 s14, {spin}
    s_mov_b64 s[80:81], -1
    s_mov_b64 s[82:83], -1
L_poll_y:
    s_mov_b64 exec, s[80:81]
    s_cbranch_execz L_y_a
    buffer_load_dwordx4 v[20:23], v116, s[52:55], s11 offen sc1
L_y_a:
    s_mov_b64 exec, s[82:83]
    s_cbranch_execz L_y_b
    buffer_load_dwordx4 v[24:27], v116, s[52:55], s12 offen sc1
L_y_b:
    s_mov_b64 exec, -1
    s_waitcnt vmcnt(0)
    """)
    tagcheck(list(range(20, 24)), 28, 's[80:81]')
    tagcheck(list(range(24, 28)), 29, 's[82:83]')
    a(f"""
    s_or_b64 vcc, s[80:81], s[82:83]
    s_cbranch_scc0 L_y_ok
    s_sub_u32 s14, s14, 1
    s_cmp_lg_u32 s14, 0
    s_cbranch_scc1 L_poll_y
L_y_ok:
    """)
    for k in range(4): a(f"v_add_f32 v{20+k}, v{20+k}, v{24+k}")
    a(f"""
    v_permlane32_swap_b32 v20, v21
    v_permlane32_swap_b32 v22, v23
    v_add_f32 v20, v20, v21
    v_add_f32 v22, v22, v23
    v_permlane16_swap_b32 v20, v22
    v_add_f32 v20, v20, v22
    v_add_f32_dpp v20, v20, v20 row_ror:8 {DP}
    v_add_f32_dpp v20, v20, v20 row_ror:4 {DP}
    v_add_f32_dpp v20, v20, v20 row_ror:2 {DP}
    v_add_f32_dpp v20, v20, v20 row_ror:1 {DP}
    v_cvt_pk_bf16_f32 v20, v20, v20
    s_mov_b32 exec_lo, 0x00010001
    s_mov_b32 exec_hi, 0x00010001
    buffer_store_short v20, v117, s[60:63], s88 offen
    s_cmp_eq_u32 s59, 144
    s_cbranch_scc0 L_hdone
    s_mov_b64 exec, 1
    v_mov_b32 v21, s43
    v_mov_b32 v22, {EPOCH}
    buffer_store_dword v21, v22, s[52:55], 0 offen
L_hdone:
    """)
    stamp(7)
    stamp_out()
    a("s_endpgm")
    a("L_stream:")
    a("""
    s_add_u32 s48, s48, s14
    s_addc_u32 s49, s49, 0
    s_mov_b32 s50, s46
    v_bfe_u32 v11, v0, 3, 1
    v_lshlrev_b32 v11, 8, v11
    v_lshl_add_u32 v11, v1, 6, v11
    v_lshl_add_u32 v11, v10, 4, v11
    v_lshlrev_b32 v10, 4, v0
    """)
    common2()
    a("""
    v_lshrrev_b32 v8, 1, v1
    v_lshlrev_b32 v8, 9, v8
    v_lshl_add_u32 v8, v2, 5, v8
    v_and_b32 v227, 1, v1
    v_lshl_add_u32 v8, v227, 4, v8
    s_lshl_b32 s12, s9, 10
    v_add_u32 v8, s12, v8
    """)
    for u in range(39, NU):
        a(f"s_cmp_gt_u32 s15, {u}")
        a(f"s_cselect_b32 s{84+u-39}, 0, 0xff800000")
    if 't' in diag:
        a("v_mov_b32 v254, 0")
        a(f"buffer_load_dword v255, v254, s[48:51], 0 offen {ld}")
        issued.append(("t", 0))
    for u in range(D0, NU):
        a(f"s_waitcnt vmcnt({D-1})")
        issue("k", u)
    gettag()
    stamp(1)
    a("s_barrier")
    stamp(2)
    a(f"ds_read_b128 v[{QR}:{QR+3}], v11 offset:{L_Q}")
    a("s_waitcnt lgkmcnt(0)")
    groups = [list(range(i, min(i + 3, NU))) for i in range(0, NU, 3)]
    nv = 0
    def dpp_group(gi):
        us = groups[gi]
        for step in range(4):
            for k, u in enumerate(us):
                d = DT + 12 * (gi & 1) + 4 * k
                if step == 0:
                    a(f"v_mov_b32_dpp v{SB+u}, v{d} quad_perm:[0,0,0,0] {DP}")
                else:
                    q = step
                    a(f"v_add_f32_dpp v{SB+u}, v{d+step}, v{SB+u} quad_perm:[{q},{q},{q},{q}] {DP}")
    for gi, us in enumerate(groups):
        wait("k", us[-1])
        for k, u in enumerate(us):
            d = DT + 12 * (gi & 1) + 4 * k
            a(f"v_mfma_f32_16x16x32_bf16 v[{d}:{d+3}], {K(u)}, v[{QR}:{QR+3}], 0")
        done = us[-1] + 1
        want = min(done, D) + max(0, done - (NU - D // 2))
        while nv < want:
            issue("v", nv); nv += 1
        if gi > 0: dpp_group(gi - 1)
    dpp_group(len(groups) - 1)
    for u in range(39, NU): a(f"v_add_f32 v{SB+u}, s{84+u-39}, v{SB+u}")
    M = DT
    a(f"v_max3_f32 v{M}, v{SB}, v{SB+1}, v{SB+2}")
    for u in range(3, NU, 2): a(f"v_max3_f32 v{M}, v{M}, v{SB+u}, v{SB+u+1}")
    c = (128 ** -0.5) * math.log2(math.e)
    a(f"s_mov_b32 s13, {f32bits(c):#x}")
    a(f"v_mul_f32 v{M}, s13, v{M}")
    a(f"""
    s_lshl_b32 s12, s9, 4
    v_lshlrev_b32 v11, 6, v2
    v_lshl_add_u32 v{M+1}, v1, 2, v11
    v_add_u32 v{M+1}, s12, v{M+1}
    ds_write_b32 v{M+1}, v{M} offset:{L_M}
    s_waitcnt lgkmcnt(0)
    """)
    stamp(3)
    a("s_barrier")
    for i in range(4): a(f"ds_read_b128 v[{M+4+4*i}:{M+7+4*i}], v11 offset:{L_M+16*i}")
    a(f"v_mov_b32 v227, 0xffffff00")
    a("s_waitcnt lgkmcnt(0)")
    a(f"v_max3_f32 v{M}, v{M+4}, v{M+5}, v{M+6}")
    for i in range(M+7, M+19, 2): a(f"v_max3_f32 v{M}, v{M}, v{i}, v{i+1}")
    a(f"v_max_f32 v{M}, v{M}, v{M+19}")
    a(f"v_and_or_b32 v{M}, v{M}, v227, s42")
    Lr = M + 2
    for u0 in range(0, NU, 4):
        us = list(range(u0, min(u0 + 4, NU)))
        for u in us: a(f"v_fma_f32 v{SB+u}, v{SB+u}, s13, -v{M}")
        for u in us: a(f"v_exp_f32 v{SB+u}, v{SB+u}")
        for u in us:
            if u == 0: a(f"v_mov_b32 v{Lr}, v{SB}")
            else: a(f"v_add_f32 v{Lr}, v{Lr}, v{SB+u}")
        for u in us: a(f"v_cvt_pk_bf16_f32 v{SB+u}, v{SB+u}, v{SB+u}")
    a(f"ds_write_b32 v{M+1}, v{Lr} offset:{L_L}")
    a("s_waitcnt lgkmcnt(0)")
    a("s_barrier")
    stamp(4)
    ACC = M + 4; P0 = M + 8
    b3done = False
    for u in range(NU):
        p = P0 + 4 * (u & 1)
        for r in range(4): a(f"v_and_b32 v{p+r}, v{SB+u}, v{4+r}")
        wait("v", u)
        while nv < min(NU, u + 1 + D):
            issue("v", nv); nv += 1
        cc = "0" if u == 0 else f"v[{ACC}:{ACC+3}]"
        a(f"v_mfma_f32_16x16x32_bf16 v[{ACC}:{ACC+3}], v[{p}:{p+3}], {K(u)}, {cc}")
        if nv == NU and not b3done:
            stamp(5)
            a("s_barrier")
            b3done = True
    assert b3done
    a(f"ds_write_b128 v8, v[{ACC}:{ACC+3}] offset:{L_O}")
    a("s_waitcnt lgkmcnt(0)")
    stamp(6)
    a("s_barrier")
    stamp_out()
    a("L_end:")
    a("s_endpgm")
    a.raw(".p2align 10")
    a.raw("L_last:")
    a.raw("s_endpgm")
    a.raw('.section .rodata,"a"'); a.raw(".p2align 6"); a.raw(f".amdhsa_kernel {NAME}_kernel")
    a.raw("  .amdhsa_next_free_vgpr 256"); a.raw("  .amdhsa_next_free_sgpr 96"); a.raw("  .amdhsa_accum_offset 256")
    a.raw("  .amdhsa_group_segment_fixed_size 0"); a.raw("  .amdhsa_kernarg_size 104"); a.raw("  .amdhsa_user_sgpr_count 2")
    a.raw("  .amdhsa_user_sgpr_kernarg_segment_ptr 1"); a.raw("  .amdhsa_system_sgpr_workgroup_id_x 1"); a.raw(".end_amdhsa_kernel")
    return a.text()

if __name__ == "__main__":
    import argparse
    ap = argparse.ArgumentParser()
    ap.add_argument("-o", default="cdna_kernels/" + NAME + ".s")
    ap.add_argument("--ld", default="nt"); ap.add_argument("--stamps", action="store_true")
    ap.add_argument("--D", type=int, default=8); ap.add_argument("--diag", default=""); ap.add_argument("--qsleep", type=int, default=4)
    args = ap.parse_args()
    open(args.o, "w").write(gen(ld=args.ld, stamps=args.stamps, D=args.D, diag=args.diag, qsleep=args.qsleep))
```

```python
import sys, math, struct
sys.path.insert(0, "gen")
from asmlib import Asm

NAME = "concat_heads__sliding_block_cached__gqa_block_cached__decode"
HDR = open("cdna_kernels/" + NAME + ".s.ref").read().split("; Override launch")[0]

def f32bits(x): return struct.unpack("<I", struct.pack("<f", x))[0]

SLOT = 4352
YOFF = 1280
QP = 4096
EPOCH = 0
SB0 = 4096 + 262144
WS_REC = 16 << 20
DELTA = 2 << 20
STAMP = 8 << 20
NU = 43
L_Q, L_M, L_L, L_O = 0, 512, 1536, 2560
LDS_BYTES = 6656
DP = "row_mask:0xf bank_mask:0xf"

def gen(ld="nt", stamps=False, D=8, spin=200000, wld=None, wolead=2, qsleep=4, diag='', D0=12, NFQ=8, NFS=16, NFO=40):
    wld = ld if wld is None else wld
    a = Asm()
    a.raw(HDR.rstrip("\n"))
    a.raw(f"; @launch grid=(256,1,1) block=(512,1,1) lds={LDS_BYTES}")
    a.raw('.amdgcn_target "amdgcn-amd-amdhsa--gfx950"')
    a.raw(".text"); a.raw(f".globl {NAME}_kernel"); a.raw(".p2align 8"); a.raw(f".type {NAME}_kernel,@function")
    a.label(f"{NAME}_kernel")
    def stamp(i):
        if 'p' in diag and i >= 4: return
        if stamps: a(f"s_memrealtime s[{64+2*i}:{65+2*i}]")
    def stamp_out():
        if not stamps: return
        a("s_waitcnt lgkmcnt(0)")
        a("s_mov_b64 exec, 1")
        a("s_lshl_b32 s7, s2, 3"); a("s_add_u32 s7, s7, s3"); a("s_lshl_b32 s7, s7, 5")
        a(f"s_add_u32 s7, s7, {STAMP}")
        a("v_mov_b32 v20, 0")
        for i in range(8): a(f"v_mov_b32 v{24+i}, s{64+2*i}")
        a("buffer_store_dwordx4 v[24:27], v20, s[52:55], s7 offen")
        a("buffer_store_dwordx4 v[28:31], v20, s[52:55], s7 offen offset:16")
        if 'D' in diag:
            stamp_out.n = getattr(stamp_out, 'n', 0) + 1
            lab = f"L_nodbg{stamp_out.n}"
            a(f"""
    s_mov_b32 s60, s38
    s_mov_b32 s61, s39
    s_movk_i32 s62, 256
    s_mov_b32 s63, 0x20000
    s_cmp_eq_u32 s3, 4
    s_cselect_b32 s7, 32, 0
    s_cbranch_scc1 {lab}a
    s_cmp_eq_u32 s3, 1
    s_cbranch_scc0 {lab}
    v_not_b32 v24, v24
{lab}a:
    """)
            for i in range(8): a(f"buffer_atomic_umax v{24+i}, v20, s[60:63], s7 offen offset:{4*i}")
            a(f"{lab}:")
    def tagcheck(regs, acc, dst='vcc'):
        a(f"v_xor_b32 v{acc}, s42, v{regs[0]}")
        for r in regs[1:]:
            a(f"v_bitop3_b32 v{acc}, v{r}, s42, v{acc} bitop3:0xbe")
        a(f"v_and_b32 v{acc}, 0xff, v{acc}")
        a(f"v_cmp_ne_u32 {dst}, 0, v{acc}")
    def masks():
        a("""
    v_and_b32 v8, 1, v0
    v_lshlrev_b32 v8, 4, v8
    v_mov_b32 v7, 0xffff
    v_lshlrev_b32 v8, v8, v7            ; 0xffff << 16*(n&1)
    v_bfe_u32 v7, v0, 1, 2              ; (n&7)>>1
    v_cmp_eq_u32 vcc, 0, v7
    v_cndmask_b32 v4, 0, v8, vcc
    v_cmp_eq_u32 vcc, 1, v7
    v_cndmask_b32 v5, 0, v8, vcc
    v_cmp_eq_u32 vcc, 2, v7
    v_cndmask_b32 v6, 0, v8, vcc
    v_cmp_eq_u32 vcc, 3, v7
    v_cndmask_b32 v7, 0, v8, vcc
    """)
    def common2():
        a(f"""
    s_load_dword s42, s[40:41], {EPOCH}
    s_mov_b32 s52, s40
    s_mov_b32 s53, s41
    s_mov_b32 s54, {WS_REC}
    s_mov_b32 s55, 0x20000
    s_lshl_b32 s6, s4, 4
    s_add_u32 s6, s6, s5                ; wslot = h*16 + j
    s_mul_i32 s8, s6, {SLOT}
    s_add_u32 s8, s8, {SB0}
    v_lshlrev_b32 v3, 4, v0             ; lane*16
    """)
        masks()
    def gettag():
        a("""
    s_waitcnt lgkmcnt(0)
    s_add_u32 s43, s42, 1
    s_and_b32 s42, s43, 0xff
    """)
    if stamps:
        for i in range(1, 8): a(f"s_mov_b32 s{64+2*i}, 0")
    stamp(0)
    KB = 12
    SB = KB + 4 * NU
    QR = 228
    DT = 232
    vK, vV = 9, 10
    def K(u): return f"v[{KB+4*u}:{KB+4*u+3}]"
    a("""
    s_load_dwordx16 s[16:31], s[0:1], 0
    s_load_dwordx8 s[32:39], s[0:1], 64
    s_load_dwordx2 s[40:41], s[0:1], 96
    s_cmp_ge_u32 s2, 256
    s_cbranch_scc1 L_end
    v_lshrrev_b32 v1, 6, v0
    v_and_b32 v0, 63, v0
    v_readfirstlane_b32 s3, v1
    s_and_b32 s4, s2, 7
    s_lshl_b32 s4, s4, 1
    s_lshr_b32 s5, s2, 7
    s_add_u32 s4, s4, s5
    s_bfe_u32 s5, s2, 0x40003           ; j = (wg>>3)&15
    v_lshrrev_b32 v1, 4, v0             ; g
    v_and_b32 v2, 15, v0                ; n
    s_mov_b32 s47, 0x20000
    s_mov_b32 s51, 0x20000
    s_cmp_lt_u32 s3, 4
    s_cbranch_scc1 L_help
    s_sub_u32 s9, s3, 4                 ; sw
    s_cmp_lt_u32 s5, 13
    s_cselect_b32 s10, 0, 13
    s_movk_i32 s11, 128
    s_cselect_b32 s11, 512, s11
    s_mov_b32 s12, 1431655766
    s_cselect_b32 s12, 330382100, s12
    s_cselect_b32 s13, 0, 0x180000
    s_sub_u32 s10, s5, s10
    s_lshl_b32 s10, s10, 2
    s_add_u32 s10, s10, s9
    s_mul_i32 s14, s10, s11
    s_add_u32 s15, s14, s11
    s_mul_hi_u32 s14, s14, s12
    s_mul_hi_u32 s15, s15, s12
    s_sub_u32 s15, s15, s14
    s_lshl_b32 s14, s14, 10
    s_add_u32 s14, s14, s13
    s_lshl_b32 s13, s4, 21
    s_add_u32 s14, s14, s13
    s_lshl_b32 s46, s15, 10
    v_bfe_u32 v9, v0, 2, 2
    v_lshlrev_b32 v9, 8, v9
    v_lshl_add_u32 v9, v1, 6, v9
    v_and_b32 v10, 3, v0
    v_lshl_add_u32 v9, v10, 4, v9
    s_cmp_lt_u32 s5, 13
    s_waitcnt lgkmcnt(0)
    s_cselect_b32 s44, s28, s18         ; K
    s_cselect_b32 s45, s29, s19
    s_cselect_b32 s48, s30, s20         ; V
    s_cselect_b32 s49, s31, s21
    s_add_u32 s44, s44, s14
    s_addc_u32 s45, s45, 0
    """)
    issued = []
    def issue(kind, u):
        vo = vK if kind == "k" else vV
        srd = "s[44:47]" if kind == "k" else "s[48:51]"
        a(f"buffer_load_dwordx4 {K(u)}, v{vo}, {srd}, 0 offen offset:{(u&3)*1024} {ld}")
        if (u & 3) == 3: a(f"v_add_u32 v{vo}, 0x1000, v{vo}")
        issued.append((kind, u))
    def wait(kind, u):
        n = len(issued) - 1 - issued.index((kind, u))
        assert n <= 63
        a(f"s_waitcnt vmcnt({n})")
    for u in range(D0): issue("k", u)
    a("s_branch L_stream")
    XR = 12; WB = 20; AB = 56; DQ = 92
    a("""
L_help:
    s_and_b32 s9, s5, 7                 ; slice
    s_mul_i32 s10, s9, 72
    v_lshrrev_b32 v9, 3, v0             ; e
    v_and_b32 v10, 7, v0                ; n&7
    v_mul_u32_u24 v11, 9, v9
    v_add_u32 v11, s10, v11
    v_and_b32 v18, -2, v11
    v_lshlrev_b32 v18, 1, v18
    v_lshlrev_b32 v11, 13, v11
    v_lshl_add_u32 v11, v10, 4, v11
    s_lshl_b32 s10, s4, 9
    s_lshl_b32 s11, s3, 7
    s_add_u32 s10, s10, s11             ; 512*h + 128*hw
    s_mov_b32 s50, 1152
    s_mov_b32 s46, 4718592
    s_cmp_ge_u32 s5, 8
    s_waitcnt lgkmcnt(0)
    s_cselect_b32 s44, s32, s22         ; wq
    s_cselect_b32 s45, s33, s23
    s_cselect_b32 s48, s26, s16         ; x
    s_cselect_b32 s49, s27, s17
    buffer_load_dwordx4 v[12:15], v18, s[48:51], 0 offen
    buffer_load_dword v16, v18, s[48:51], 0 offen offset:16
    """)
    for t in range(9):
        r = WB + 4 * t
        a(f"buffer_load_dwordx4 v[{r}:{r+3}], v11, s[44:47], s10 offen {wld}")
        if t < 8 and 'w' not in diag: a("s_add_u32 s10, s10, 0x2000")
    stamp(1)
    common2()
    NT = 0
    if 'c' in diag:
        NT = 1
        a(f"""
    s_getpc_b64 s[60:61]
L_pc:
    s_and_b32 s11, s5, 3
    s_lshl_b32 s11, s11, 2
    s_add_u32 s11, s11, s3
    s_min_u32 s11, s11, (L_last-L_pc)/1024-1
    s_lshl_b32 s11, s11, 10
    s_add_u32 s60, s60, s11
    s_addc_u32 s61, s61, 0
    v_mov_b32 v105, s61
    v_add_co_u32 v104, vcc, s60, v3
    v_addc_co_u32 v105, vcc, 0, v105, vcc
    global_load_dwordx4 v[108:111], v[104:105], off
    """)
    if 't' in diag:
        NT += 2
        a(f"""
    s_cmp_ge_u32 s5, 8
    s_cselect_b32 s60, s34, s24         ; wo
    s_cselect_b32 s61, s35, s25
    s_mov_b32 s62, 4718592
    s_mov_b32 s63, 0x20000
    s_lshl_b32 s11, s4, 8
    s_lshl_b32 s12, s9, 5
    s_add_u32 s11, s11, s12
    s_mul_i32 s11, s11, 1152
    v_mov_b32 v99, 0
    buffer_load_dword v104, v99, s[52:55], s8 offen sc1
    buffer_load_dword v105, v99, s[60:63], s11 offen {wld}
    """)
    a("""
    v_and_b32 v17, 1, v9
    v_lshlrev_b32 v17, 4, v17           ; 16*(e&1)
    s_mov_b32 s11, 0x01000100
    s_mov_b32 s12, 0x03020302
    v_mov_b32 v19, 0xffffff00
    v_lshlrev_b32 v96, 4, v2
    v_lshl_add_u32 v96, v1, 7, v96
    v_lshrrev_b32 v97, 1, v1
    s_lshl_b32 s10, s6, 10
    s_lshl_b32 s13, s3, 8
    s_add_u32 s10, s10, s13
    """)
    a(f"s_add_u32 s10, s10, {QP}")
    a(f"s_waitcnt vmcnt({9+NT})")
    for k in range(4): a(f"v_alignbit_b32 v{XR+k}, v{XR+k+1}, v{XR+k}, v17")
    a(f"v_lshrrev_b32 v{XR+4}, v17, v{XR+4}")
    for t in range(9):
        sel = "s12" if t & 1 else "s11"
        a(f"v_perm_b32 v18, v{XR + t//2}, v{XR + t//2}, {sel}")
        for r in range(4): a(f"v_and_b32 v{AB+4*t+r}, v18, v{4+r}")
    gettag()
    for t in range(9):
        r = WB + 4 * t
        a(f"s_waitcnt vmcnt({8-t+NT})")
        c = "0" if t == 0 else f"v[{DQ}:{DQ+3}]"
        a(f"v_mfma_f32_16x16x32_bf16 v[{DQ}:{DQ+3}], v[{AB+4*t}:{AB+4*t+3}], v[{r}:{r+3}], {c}")
    a(f"""
    v_permlane32_swap_b32 v{DQ}, v100
    v_permlane32_swap_b32 v{DQ+1}, v101
    v_permlane32_swap_b32 v{DQ+2}, v102
    v_permlane32_swap_b32 v{DQ+3}, v103
    v_add_f32_dpp v{DQ}, v100, v{DQ} row_ror:8 {DP}
    v_add_f32_dpp v{DQ+1}, v101, v{DQ+1} row_ror:8 {DP}
    v_add_f32_dpp v{DQ+2}, v102, v{DQ+2} row_ror:8 {DP}
    v_add_f32_dpp v{DQ+3}, v103, v{DQ+3} row_ror:8 {DP}
    v_and_or_b32 v{DQ}, v{DQ}, v19, s42
    v_and_or_b32 v{DQ+1}, v{DQ+1}, v19, s42
    v_and_or_b32 v{DQ+2}, v{DQ+2}, v19, s42
    v_and_or_b32 v{DQ+3}, v{DQ+3}, v19, s42
    s_mov_b64 exec, 0x00ff00ff
    buffer_store_dwordx4 v[{DQ}:{DQ+3}], v96, s[52:55], s10 offen
    s_mov_b64 exec, -1
    s_add_u32 s15, s10, {DELTA}
    v_mov_b32 v100, v96
    """)
    stamp(2)
    a(f"""
    s_cmp_lt_u32 s5, 13
    s_cselect_b32 s10, 8, 0
    s_lshl_b32 s11, s4, 4
    s_add_u32 s10, s10, s11
    s_lshl_b32 s10, s10, 10
    s_add_u32 s10, s10, s13
    s_add_u32 s10, s10, {QP}
    s_add_u32 s11, s10, 4096
    v_lshlrev_b32 v96, 10, v1
    v_lshl_add_u32 v96, v2, 4, v96
    v_and_b32 v98, 1, v1
    v_lshl_add_u32 v97, v98, 1, v97
    v_lshl_add_u32 v97, v10, 3, v97
    v_lshrrev_b32 v98, 3, v2
    v_lshl_add_u32 v97, v98, 2, v97
    v_lshlrev_b32 v97, 1, v97
    s_lshl_b32 s12, s3, 7
    v_add_u32 v97, s12, v97
    s_mov_b32 s14, {spin+NFQ}
    {'s_branch L_q_ok' if 'q' in diag else ''}
L_poll_q:
    buffer_load_dwordx4 v[20:23], v96, s[52:55], s10 offen sc1
    buffer_load_dwordx4 v[24:27], v96, s[52:55], s11 offen sc1
    s_waitcnt vmcnt(0)
    """)
    if 'p' in diag:
        for i in range(4):
            a(f"s_cmp_eq_u32 s14, {spin-i}\ns_cbranch_scc0 L_np{i}\ns_memrealtime s[{72+2*i}:{73+2*i}]\nL_np{i}:")
    tagcheck(list(range(20, 28)), 28)
    a(f"""
    s_cbranch_vccz L_q_ok
    s_sleep {qsleep}
    s_sub_u32 s14, s14, 1
    s_cmp_lg_u32 s14, {spin}
    s_cbranch_scc1 L_q_more
    s_mov_b64 exec, 0x00ff00ff
    buffer_store_dwordx4 v[{DQ}:{DQ+3}], v100, s[52:55], s15 offen sc1
    s_mov_b64 exec, -1
    s_add_u32 s10, s10, {DELTA}
    s_add_u32 s11, s11, {DELTA}
L_q_more:
    s_cmp_lg_u32 s14, 0
    s_cbranch_scc1 L_poll_q
L_q_ok:
    """)
    for k in range(4): a(f"v_add_f32 v{20+k}, v{20+k}, v{24+k}")
    a(f"""
    v_permlane32_swap_b32 v20, v21
    v_permlane32_swap_b32 v22, v23
    v_add_f32 v20, v20, v21
    v_add_f32 v22, v22, v23
    v_permlane16_swap_b32 v20, v22
    v_add_f32 v20, v20, v22
    v_cvt_pk_bf16_f32 v20, v20, v20
    ds_write_b16 v97, v20 offset:{L_Q}
    s_mov_b64 exec, 0x00ff00ff
    buffer_store_dwordx4 v[{DQ}:{DQ+3}], v100, s[52:55], s15 offen sc1
    s_mov_b64 exec, -1
    s_waitcnt lgkmcnt(0)
    """)
    stamp(3)
    a("s_barrier")
    a("s_cmp_eq_u32 s3, 0")
    a("s_cbranch_scc0 L_oproj")
    a("v_lshlrev_b32 v9, 6, v2")
    a(f"s_add_u32 s9, s8, {DELTA}")
    a("s_barrier")
    a("s_barrier")
    for i in range(4): a(f"ds_read_b128 v[{20+4*i}:{23+4*i}], v9 offset:{L_M+16*i}")
    for i in range(4): a(f"ds_read_b128 v[{36+4*i}:{39+4*i}], v9 offset:{L_L+16*i}")
    a("s_waitcnt lgkmcnt(4)")
    a("v_max3_f32 v20, v20, v21, v22")
    for i in range(23, 35, 2): a(f"v_max3_f32 v20, v20, v{i}, v{i+1}")
    a("v_max_f32 v20, v20, v35")
    a("s_waitcnt lgkmcnt(0)")
    a("v_add_f32 v21, v36, v37")
    for i in range(38, 52): a(f"v_add_f32 v21, v21, v{i}")
    a("""
    v_and_or_b32 v20, v20, v19, s42
    v_and_or_b32 v21, v21, v19, s42
    v_mov_b32 v22, v20
    v_mov_b32 v23, v21
    v_and_b32 v24, 3, v2
    v_lshlrev_b32 v24, 4, v24
    v_lshrrev_b32 v25, 3, v2
    v_lshl_add_u32 v24, v25, 6, v24
    s_mov_b64 exec, 0xf0f
    buffer_store_dwordx4 v[20:23], v24, s[52:55], s8 offen offset:1024
    buffer_store_dwordx4 v[20:23], v24, s[52:55], s9 offen offset:1024 sc1
    s_mov_b64 exec, -1
    """)
    stamp(4)
    a("s_barrier")
    a("s_barrier")
    stamp(5)
    for i in range(4): a(f"ds_read_b128 v[{20+4*i}:{23+4*i}], v3 offset:{L_O+1024*i}")
    a("s_waitcnt lgkmcnt(2)")
    for k in range(4): a(f"v_add_f32 v{20+k}, v{20+k}, v{24+k}")
    a("s_waitcnt lgkmcnt(0)")
    for k in range(4): a(f"v_add_f32 v{28+k}, v{28+k}, v{32+k}")
    for k in range(4): a(f"v_add_f32 v{20+k}, v{20+k}, v{28+k}")
    for k in range(4): a(f"v_and_or_b32 v{20+k}, v{20+k}, v19, s42")
    a("buffer_store_dwordx4 v[20:23], v3, s[52:55], s8 offen")
    a("buffer_store_dwordx4 v[20:23], v3, s[52:55], s9 offen sc1")
    stamp(6)
    if stamps:
        a("s_waitcnt vmcnt(0)")
        stamp(7)
    stamp_out()
    a("s_endpgm")
    WO = 20; G = 68; AO = 84; DO = 100
    a(f"""
L_oproj:
    s_cmp_ge_u32 s5, 8
    s_cselect_b32 s44, s34, s24         ; wo
    s_cselect_b32 s45, s35, s25
    s_cselect_b32 s12, 0, 13
    s_cselect_b32 s13, 13, 3
    s_lshl_b32 s10, s4, 8
    s_lshl_b32 s11, s9, 5
    s_add_u32 s10, s10, s11             ; R0 = 256h + 32 slice
    s_mul_i32 s10, s10, 1152
    s_sub_u32 s11, s3, 1
    s_mul_i32 s14, s11, 384
    s_add_u32 s10, s10, s14
    v_mul_u32_u24 v11, 4608, v9
    v_lshl_add_u32 v11, v10, 4, v11
    s_lshl_b32 s15, s4, 4
    s_add_u32 s15, s15, s12
    s_mul_i32 s15, s15, {SLOT}
    s_add_u32 s15, s15, {SB0}
    v_cmp_gt_u32 s[80:81], s13, v10
    v_add_u32 v13, 8, v10
    v_cmp_gt_u32 s[82:83], s13, v13
    v_cndmask_b32 v12, 0, v10, s[80:81]
    v_cndmask_b32 v13, 0, v13, s[82:83]
    v_mul_u32_u24 v14, {SLOT}, v12
    v_mul_u32_u24 v15, {SLOT}, v13
    v_lshl_add_u32 v12, v9, 4, v14      ; + 16 e
    v_lshl_add_u32 v13, v9, 4, v15
    s_lshr_b32 s56, s9, 2
    s_lshl_b32 s56, s56, 6
    s_add_u32 s56, s56, s15
    s_lshl_b32 s57, s9, 7
    s_add_u32 s57, s57, s15             ; o soffset
    v_lshlrev_b32 v16, 4, v2
    v_lshl_add_u32 v16, v1, 7, v16      ; 128 g + 16 n
    v_lshrrev_b32 v18, 1, v1
    s_mul_i32 s58, s11, 768
    s_add_u32 s58, s58, s8
    s_lshl_b32 s59, s11, 8
    s_add_u32 s59, s59, s2
    s_cmp_ge_u32 s59, 144
    s_cselect_b32 s11, 144, 0
    s_cselect_b32 s12, {8*SLOT}, 0
    s_sub_u32 s11, s59, s11
    s_lshl_b32 s11, s11, 4
    s_add_u32 s11, s11, s12
    s_add_u32 s11, s11, {YOFF+SB0}
    s_add_u32 s12, s11, {128*SLOT}
    v_lshl_add_u32 v116, v9, 4, v10
    v_mul_u32_u24 v116, {SLOT}, v116
    v_and_b32 v117, 1, v1
    v_lshl_add_u32 v117, v117, 1, v18
    v_lshlrev_b32 v117, 1, v117
    s_andn2_b32 s88, s59, 15
    s_lshl_b32 s88, s88, 3
    s_and_b32 s89, s59, 7
    s_lshl_b32 s89, s89, 4
    s_add_u32 s88, s88, s89
    s_and_b32 s89, s59, 8
    s_add_u32 s88, s88, s89
    s_mov_b32 s60, s36
    s_mov_b32 s61, s37
    s_movk_i32 s62, 2304
    s_mov_b32 s63, 0x20000
    s_barrier
    s_barrier
    s_mov_b32 s14, {spin+NFS}
    buffer_load_dwordx4 v[{G}:{G+3}], v12, s[52:55], s57 offen sc1
    buffer_load_dwordx4 v[{G+4}:{G+7}], v13, s[52:55], s57 offen sc1
    {'s_branch L_st_ok' if 's' in diag else ''}
L_poll_st:
    buffer_load_dwordx2 v[{G+8}:{G+9}], v14, s[52:55], s56 offen offset:1024 sc1
    buffer_load_dwordx2 v[{G+10}:{G+11}], v15, s[52:55], s56 offen offset:1024 sc1
    s_waitcnt vmcnt(0)
    """)
    tagcheck([G+8, G+9, G+10, G+11], 80)
    a(f"""
    s_cbranch_vccz L_st_ok
    s_sleep 8
    s_sub_u32 s14, s14, 1
    s_cmp_eq_u32 s14, {spin}
    s_cselect_b32 s13, {DELTA}, 0
    s_add_u32 s56, s56, s13
    s_cmp_lg_u32 s14, 0
    s_cbranch_scc1 L_poll_st
L_st_ok:
    v_max_f32 v80, v{G+8}, v{G+10}
    v_max_f32_dpp v80, v80, v80 quad_perm:[1,0,3,2] {DP}
    v_max_f32_dpp v80, v80, v80 quad_perm:[2,3,0,1] {DP}
    v_max_f32_dpp v80, v80, v80 row_half_mirror {DP}
    v_sub_f32 v{G+8}, v{G+8}, v80
    v_sub_f32 v{G+10}, v{G+10}, v80
    v_exp_f32 v{G+8}, v{G+8}
    v_exp_f32 v{G+10}, v{G+10}
    v_cndmask_b32 v{G+8}, 0, v{G+8}, s[80:81]
    v_cndmask_b32 v{G+10}, 0, v{G+10}, s[82:83]
    v_mul_f32 v{G+9}, v{G+8}, v{G+9}
    v_fmac_f32 v{G+9}, v{G+10}, v{G+11}
    v_add_f32_dpp v{G+9}, v{G+9}, v{G+9} quad_perm:[1,0,3,2] {DP}
    v_add_f32_dpp v{G+9}, v{G+9}, v{G+9} quad_perm:[2,3,0,1] {DP}
    v_add_f32_dpp v{G+9}, v{G+9}, v{G+9} row_half_mirror {DP}
    v_rcp_f32 v{G+9}, v{G+9}
    v_mul_f32 v{G+8}, v{G+8}, v{G+9}
    v_mul_f32 v{G+10}, v{G+10}, v{G+9}
    """)
    stamp(4)
    a("s_barrier")
    for t in range(4):
        for cb in range(3):
            r = WO + 4 * (3 * t + cb)
            a(f"buffer_load_dwordx4 v[{r}:{r+3}], v11, s[44:47], s10 offen offset:{1152*t+128*cb} {wld}")
    a("s_barrier")
    a(f"s_mov_b32 s14, {spin+NFO}")
    a(f"s_waitcnt vmcnt({wolead})")
    a(f"""
L_poll_o:
    buffer_load_dwordx4 v[{G}:{G+3}], v12, s[52:55], s57 offen sc1
    buffer_load_dwordx4 v[{G+4}:{G+7}], v13, s[52:55], s57 offen sc1
    s_waitcnt vmcnt(0)
    """)
    if stamps:
        a(f"s_cmp_eq_u32 s14, {spin+NFO}\ns_cbranch_scc0 L_nost\ns_memrealtime s[66:67]\nL_nost:")
    tagcheck(list(range(G, G+8)), 80)
    a(f"""
    s_cbranch_vccz L_o_ok
    s_sub_u32 s14, s14, 1
    s_cmp_eq_u32 s14, {spin}
    s_cselect_b32 s13, {DELTA}, 0
    s_add_u32 s57, s57, s13
    s_cmp_lg_u32 s14, 0
    s_cbranch_scc1 L_poll_o
L_o_ok:
    """)
    stamp(5)
    for k in range(4): a(f"v_mul_f32 v{G+k}, v{G+8}, v{G+k}")
    for k in range(4): a(f"v_fmac_f32 v{G+k}, v{G+10}, v{G+4+k}")
    for pat in ("quad_perm:[1,0,3,2]", "quad_perm:[2,3,0,1]", "row_half_mirror"):
        for r in (G, G+1, G+2, G+3):
            a(f"v_add_f32_dpp v{r}, v{r}, v{r} {pat} {DP}")
    for t in range(4):
        a(f"v_cvt_pk_bf16_f32 v{G+t}, v{G+t}, v{G+t}")
    for t in range(4):
        for r in range(4): a(f"v_and_b32 v{AO+4*t+r}, v{G+t}, v{4+r}")
        if t > 0:
            for cb in range(3):
                r = WO + 4 * (3 * (t-1) + cb); d = DO + 4 * cb
                c = "0" if t == 1 else f"v[{d}:{d+3}]"
                a(f"v_mfma_f32_16x16x32_bf16 v[{d}:{d+3}], v[{AO+4*(t-1)}:{AO+4*(t-1)+3}], v[{r}:{r+3}], {c}")
    for cb in range(3):
        r = WO + 4 * (9 + cb); d = DO + 4 * cb
        a(f"v_mfma_f32_16x16x32_bf16 v[{d}:{d+3}], v[{AO+12}:{AO+15}], v[{r}:{r+3}], v[{d}:{d+3}]")
    a("s_mov_b32 s56, 0x00ff00ff\ns_mov_b32 s57, 0x00ff00ff")
    for i in range(4): a(f"v_permlane32_swap_b32 v{DO+i}, v{DO+4+i}")
    for i in range(4): a(f"v_permlane32_swap_b32 v{DO+8+i}, v{DO+12+i}")
    for i in range(4): a(f"v_add_f32_dpp v{DO+i}, v{DO+4+i}, v{DO+i} row_ror:8 {DP}")
    for i in range(4): a(f"v_add_f32_dpp v{DO+8+i}, v{DO+12+i}, v{DO+8+i} row_ror:8 {DP}")
    for r in (DO, DO+1, DO+2, DO+3, DO+8, DO+9, DO+10, DO+11): a(f"v_and_or_b32 v{r}, v{r}, v19, s42")
    a(f"""
    s_mov_b64 exec, s[56:57]
    buffer_store_dwordx4 v[{DO}:{DO+3}], v16, s[52:55], s58 offen offset:{YOFF} sc1
    s_mov_b32 exec_hi, 0
    buffer_store_dwordx4 v[{DO+8}:{DO+11}], v16, s[52:55], s58 offen offset:{YOFF+512} sc1
    s_mov_b64 exec, -1
    """)
    stamp(6)
    a(f"""
    s_cmp_ge_u32 s59, 288
    s_cbranch_scc1 L_hdone
    s_mov_b32 s14, {spin}
    s_mov_b64 s[80:81], -1
    s_mov_b64 s[82:83], -1
L_poll_y:
    s_mov_b64 exec, s[80:81]
    s_cbranch_execz L_y_a
    buffer_load_dwordx4 v[20:23], v116, s[52:55], s11 offen sc1
L_y_a:
    s_mov_b64 exec, s[82:83]
    s_cbranch_execz L_y_b
    buffer_load_dwordx4 v[24:27], v116, s[52:55], s12 offen sc1
L_y_b:
    s_mov_b64 exec, -1
    s_waitcnt vmcnt(0)
    """)
    tagcheck(list(range(20, 24)), 28, 's[80:81]')
    tagcheck(list(range(24, 28)), 29, 's[82:83]')
    a(f"""
    s_or_b64 vcc, s[80:81], s[82:83]
    s_cbranch_scc0 L_y_ok
    s_sub_u32 s14, s14, 1
    s_cmp_lg_u32 s14, 0
    s_cbranch_scc1 L_poll_y
L_y_ok:
    """)
    for k in range(4): a(f"v_add_f32 v{20+k}, v{20+k}, v{24+k}")
    a(f"""
    v_permlane32_swap_b32 v20, v21
    v_permlane32_swap_b32 v22, v23
    v_add_f32 v20, v20, v21
    v_add_f32 v22, v22, v23
    v_permlane16_swap_b32 v20, v22
    v_add_f32 v20, v20, v22
    v_add_f32_dpp v20, v20, v20 row_ror:8 {DP}
    v_add_f32_dpp v20, v20, v20 row_ror:4 {DP}
    v_add_f32_dpp v20, v20, v20 row_ror:2 {DP}
    v_add_f32_dpp v20, v20, v20 row_ror:1 {DP}
    v_cvt_pk_bf16_f32 v20, v20, v20
    s_mov_b32 exec_lo, 0x00010001
    s_mov_b32 exec_hi, 0x00010001
    buffer_store_short v20, v117, s[60:63], s88 offen
    s_cmp_eq_u32 s59, 144
    s_cbranch_scc0 L_hdone
    s_mov_b64 exec, 1
    v_mov_b32 v21, s43
    v_mov_b32 v22, {EPOCH}
    buffer_store_dword v21, v22, s[52:55], 0 offen
L_hdone:
    """)
    stamp(7)
    stamp_out()
    a("s_endpgm")
    a("L_stream:")
    a("""
    s_add_u32 s48, s48, s14
    s_addc_u32 s49, s49, 0
    s_mov_b32 s50, s46
    v_bfe_u32 v11, v0, 3, 1
    v_lshlrev_b32 v11, 8, v11
    v_lshl_add_u32 v11, v1, 6, v11
    v_lshl_add_u32 v11, v10, 4, v11
    v_lshlrev_b32 v10, 4, v0
    """)
    common2()
    a("""
    v_lshrrev_b32 v8, 1, v1
    v_lshlrev_b32 v8, 9, v8
    v_lshl_add_u32 v8, v2, 5, v8
    v_and_b32 v227, 1, v1
    v_lshl_add_u32 v8, v227, 4, v8
    s_lshl_b32 s12, s9, 10
    v_add_u32 v8, s12, v8
    """)
    for u in range(39, NU):
        a(f"s_cmp_gt_u32 s15, {u}")
        a(f"s_cselect_b32 s{84+u-39}, 0, 0xff800000")
    if 't' in diag:
        a("v_mov_b32 v254, 0")
        a(f"buffer_load_dword v255, v254, s[48:51], 0 offen {ld}")
        issued.append(("t", 0))
    for u in range(D0, NU):
        a(f"s_waitcnt vmcnt({D-1})")
        issue("k", u)
    gettag()
    stamp(1)
    a("s_barrier")
    stamp(2)
    a(f"ds_read_b128 v[{QR}:{QR+3}], v11 offset:{L_Q}")
    a("s_waitcnt lgkmcnt(0)")
    groups = [list(range(i, min(i + 3, NU))) for i in range(0, NU, 3)]
    nv = 0
    def dpp_group(gi):
        us = groups[gi]
        for step in range(4):
            for k, u in enumerate(us):
                d = DT + 12 * (gi & 1) + 4 * k
                if step == 0:
                    a(f"v_mov_b32_dpp v{SB+u}, v{d} quad_perm:[0,0,0,0] {DP}")
                else:
                    q = step
                    a(f"v_add_f32_dpp v{SB+u}, v{d+step}, v{SB+u} quad_perm:[{q},{q},{q},{q}] {DP}")
    for gi, us in enumerate(groups):
        wait("k", us[-1])
        for k, u in enumerate(us):
            d = DT + 12 * (gi & 1) + 4 * k
            a(f"v_mfma_f32_16x16x32_bf16 v[{d}:{d+3}], {K(u)}, v[{QR}:{QR+3}], 0")
        done = us[-1] + 1
        want = min(done, D) + max(0, done - (NU - D // 2))
        while nv < want:
            issue("v", nv); nv += 1
        if gi > 0: dpp_group(gi - 1)
    dpp_group(len(groups) - 1)
    for u in range(39, NU): a(f"v_add_f32 v{SB+u}, s{84+u-39}, v{SB+u}")
    M = DT
    a(f"v_max3_f32 v{M}, v{SB}, v{SB+1}, v{SB+2}")
    for u in range(3, NU, 2): a(f"v_max3_f32 v{M}, v{M}, v{SB+u}, v{SB+u+1}")
    c = (128 ** -0.5) * math.log2(math.e)
    a(f"s_mov_b32 s13, {f32bits(c):#x}")
    a(f"v_mul_f32 v{M}, s13, v{M}")
    a(f"""
    s_lshl_b32 s12, s9, 4
    v_lshlrev_b32 v11, 6, v2
    v_lshl_add_u32 v{M+1}, v1, 2, v11
    v_add_u32 v{M+1}, s12, v{M+1}
    ds_write_b32 v{M+1}, v{M} offset:{L_M}
    s_waitcnt lgkmcnt(0)
    """)
    stamp(3)
    a("s_barrier")
    for i in range(4): a(f"ds_read_b128 v[{M+4+4*i}:{M+7+4*i}], v11 offset:{L_M+16*i}")
    a(f"v_mov_b32 v227, 0xffffff00")
    a("s_waitcnt lgkmcnt(0)")
    a(f"v_max3_f32 v{M}, v{M+4}, v{M+5}, v{M+6}")
    for i in range(M+7, M+19, 2): a(f"v_max3_f32 v{M}, v{M}, v{i}, v{i+1}")
    a(f"v_max_f32 v{M}, v{M}, v{M+19}")
    a(f"v_and_or_b32 v{M}, v{M}, v227, s42")
    Lr = M + 2
    for u0 in range(0, NU, 4):
        us = list(range(u0, min(u0 + 4, NU)))
        for u in us: a(f"v_fma_f32 v{SB+u}, v{SB+u}, s13, -v{M}")
        for u in us: a(f"v_exp_f32 v{SB+u}, v{SB+u}")
        for u in us:
            if u == 0: a(f"v_mov_b32 v{Lr}, v{SB}")
            else: a(f"v_add_f32 v{Lr}, v{Lr}, v{SB+u}")
        for u in us: a(f"v_cvt_pk_bf16_f32 v{SB+u}, v{SB+u}, v{SB+u}")
    a(f"ds_write_b32 v{M+1}, v{Lr} offset:{L_L}")
    a("s_waitcnt lgkmcnt(0)")
    a("s_barrier")
    stamp(4)
    ACC = M + 4; P0 = M + 8
    b3done = False
    for u in range(NU):
        p = P0 + 4 * (u & 1)
        for r in range(4): a(f"v_and_b32 v{p+r}, v{SB+u}, v{4+r}")
        wait("v", u)
        while nv < min(NU, u + 1 + D):
            issue("v", nv); nv += 1
        cc = "0" if u == 0 else f"v[{ACC}:{ACC+3}]"
        a(f"v_mfma_f32_16x16x32_bf16 v[{ACC}:{ACC+3}], v[{p}:{p+3}], {K(u)}, {cc}")
        if nv == NU and not b3done:
            stamp(5)
            a("s_barrier")
            b3done = True
    assert b3done
    a(f"ds_write_b128 v8, v[{ACC}:{ACC+3}] offset:{L_O}")
    a("s_waitcnt lgkmcnt(0)")
    stamp(6)
    a("s_barrier")
    stamp_out()
    a("L_end:")
    a("s_endpgm")
    a.raw(".p2align 10")
    a.raw("L_last:")
    a.raw("s_endpgm")
    a.raw('.section .rodata,"a"'); a.raw(".p2align 6"); a.raw(f".amdhsa_kernel {NAME}_kernel")
    a.raw("  .amdhsa_next_free_vgpr 256"); a.raw("  .amdhsa_next_free_sgpr 96"); a.raw("  .amdhsa_accum_offset 256")
    a.raw("  .amdhsa_group_segment_fixed_size 0"); a.raw("  .amdhsa_kernarg_size 104"); a.raw("  .amdhsa_user_sgpr_count 2")
    a.raw("  .amdhsa_user_sgpr_kernarg_segment_ptr 1"); a.raw("  .amdhsa_system_sgpr_workgroup_id_x 1"); a.raw(".end_amdhsa_kernel")
    return a.text()

if __name__ == "__main__":
    import argparse
    ap = argparse.ArgumentParser()
    ap.add_argument("-o", default="cdna_kernels/" + NAME + ".s")
    ap.add_argument("--ld", default="nt"); ap.add_argument("--stamps", action="store_true")
    ap.add_argument("--D", type=int, default=8); ap.add_argument("--diag", default=""); ap.add_argument("--qsleep", type=int, default=4)
    args = ap.parse_args()
    open(args.o, "w").write(gen(ld=args.ld, stamps=args.stamps, D=args.D, diag=args.diag, qsleep=args.qsleep))
```
